```python
import torch

def _softmax(x, axis=-1):
    return torch.softmax(x, dim=axis)

def _gelu(x):
    return torch.nn.functional.gelu(x, approximate='tanh')

def _silu(x):
    return torch.nn.functional.silu(x)

def _sigmoid(x):
    return torch.sigmoid(x)

def _layernorm(x, axis=-1, eps=1e-05):
    m = x.mean(dim=axis, keepdim=True)
    v = x.var(dim=axis, keepdim=True, unbiased=False)
    return (x - m) / torch.sqrt(v + eps)

def _scatter_add(tgt, idx, src, axis=0):
    return tgt.clone().index_add_(axis, idx, src)

def _segment_sum(src, seg, n):
    out = torch.zeros((n,) + src.shape[1:], dtype=src.dtype)
    return out.index_add_(0, seg, src)

def _pad(x, pw):
    flat = tuple((v for pair in reversed(pw) for v in pair))
    return torch.nn.functional.pad(x, flat)
kernel_name = 'adaLN_cond__gqa_block_cached__glu_gated_bilinear__decode'

def setup_inputs():

    _w = lambda a: (lambda t: t.to(torch.bfloat16) if t.is_floating_point() else t)(torch.as_tensor(a))

    def _A_setup():
        B, Sq, D = (2, 1, 512)
        Hq, Hkv, Sk, Dh = (32, 8, 32768, 128)
        assert Hq % Hkv == 0, (Hq, Hkv)
        return {'x': _w((lambda *s: torch.randn(*s, dtype=torch.bfloat16) * 0.1)(B, Sq, D)), 'k_cache': _w((lambda *s: torch.randn(*s, dtype=torch.bfloat16) * 0.8)(B, Hkv, Sk, Dh)), 'v_cache': _w((lambda *s: torch.randn(*s, dtype=torch.bfloat16) * 12.8)(B, Hkv, Sk, Dh)), 'wq': _w((lambda *s: torch.randn(*s, dtype=torch.bfloat16) * 0.8)(D, Hq * Dh) * D ** (-0.5)), 'wo': _w((lambda *s: torch.randn(*s, dtype=torch.bfloat16) * 12.8)(Hq * Dh, D) * (Hq * Dh) ** (-0.5))}
    _A_in = _A_setup()

    def _B_setup():
        B, S, D, F = (2, 1, 512, 1792)
        return {'x': _w((lambda *s: torch.randn(*s, dtype=torch.bfloat16) * 0.1)(B, S, D)), 'w_gate': _w((lambda *s: torch.randn(*s, dtype=torch.bfloat16) * 12.8)(D, F) * D ** (-0.5)), 'w_up': _w((lambda *s: torch.randn(*s, dtype=torch.bfloat16) * 12.8)(D, F) * D ** (-0.5)), 'w_down': _w((lambda *s: torch.randn(*s, dtype=torch.bfloat16) * 12.8)(F, D) * F ** (-0.5))}
    _B_in = _B_setup()
    return {'A_x': _A_in['x'], 'A_k_cache': _A_in['k_cache'], 'A_v_cache': _A_in['v_cache'], 'A_wq': _A_in['wq'], 'A_wo': _A_in['wo'], 'B_x': _B_in['x'], 'B_w_gate': _B_in['w_gate'], 'B_w_up': _B_in['w_up'], 'B_w_down': _B_in['w_down'], 'c': _w((lambda *s: torch.randn(*s, dtype=torch.bfloat16) * 0.2)(2, 512) * 8.0), 'w_mod': _w((lambda *s: torch.randn(*s, dtype=torch.bfloat16) * 0.2)(512, 6 * 512) * 512 ** (-0.5) * 8.0)}

def reference(A_x, A_k_cache, A_v_cache, A_wq, A_wo, B_x, B_w_gate, B_w_up, B_w_down, c, w_mod):

    def _A_ref(x, k_cache, v_cache, wq, wo):
        B, Sq, D = x.shape
        Hq, Dh = (32, 128)
        Hkv = k_cache.shape[1]
        rep = Hq // Hkv
        q = (lambda x, *d: x.permute(*d))((x @ wq).reshape(B, Sq, Hq, Dh), 0, 2, 1, 3)
        k = (lambda x, n, axis: torch.repeat_interleave(x, n, dim=axis))(k_cache, rep, axis=1)
        v = (lambda x, n, axis: torch.repeat_interleave(x, n, dim=axis))(v_cache, rep, axis=1)
        scores = torch.einsum('bhqd,bhkd->bhqk', q, k) * Dh ** (-0.5)
        p = _softmax(scores, axis=-1)
        o = torch.einsum('bhqk,bhkd->bhqd', p, v)
        return (lambda x, *d: x.permute(*d))(o, 0, 2, 1, 3).reshape(B, Sq, Hq * Dh) @ wo

    def _B_ref(x, w_gate, w_up, w_down):
        g = torch.einsum('bsd,df->bsf', x, w_gate)
        u = torch.einsum('bsd,df->bsf', x, w_up)
        h = g * u
        return torch.einsum('bsf,fd->bsd', h, w_down)
    x = A_x
    mod = (_silu(c) @ w_mod).reshape(c.shape[0], 6, 1, -1)
    sa, ca, ga, sb, cb, gb = (mod[:, 0].clone(), mod[:, 1].clone(), mod[:, 2].clone(), mod[:, 3].clone(), mod[:, 4].clone(), mod[:, 5].clone())
    h = _layernorm(x, axis=-1) * (1 + ca) + sa
    x = x + ga * _A_ref(h, A_k_cache, A_v_cache, A_wq, A_wo)
    h = _layernorm(x, axis=-1) * (1 + cb) + sb
    x = x + gb * _B_ref(h, B_w_gate, B_w_up, B_w_down)
    return x
```

```python
import sys

NAME = "adaLN_cond__gqa_block_cached__glu_gated_bilinear__decode"

WS_MODP = 0x0000
WS_QP   = 0x20000
WS_PO   = 0x40000
WS_PML  = 0xC0000
WS_ZERO = 0xC4000
WS_ACC1 = 0xC4000
WS_GU   = 0xC8000
WS_ACC2 = 0xD0000
WS_X1   = 0xD4000

LOG2E = 1.4426950408889634
SCALE = 128 ** -0.5


def f32hex(x):
    import struct
    return "0x%08x" % struct.unpack("<I", struct.pack("<f", x))[0]


class Asm:
    def __init__(self):
        self.lines = []

    def __call__(self, s):
        for ln in s.strip("\n").split("\n"):
            self.lines.append("    " + ln.strip())

    def label(self, s):
        self.lines.append(s + ":")

    def raw(self, s):
        self.lines.append(s)

    def text(self):
        return "\n".join(self.lines) + "\n"


def kernel_begin(a, name):
    a.raw(".text")
    a.raw(f".globl {name}")
    a.raw(".p2align 8")
    a.raw(f".type {name},@function")
    a.label(name)


def kernel_desc(a, name, vgpr, sgpr=102):
    acc = (vgpr + 3) // 4 * 4
    a.raw('.section .rodata,"a"')
    a.raw(".p2align 6")
    a.raw(f".amdhsa_kernel {name}")
    a.raw(f"  .amdhsa_next_free_vgpr {vgpr}")
    a.raw(f"  .amdhsa_next_free_sgpr {sgpr}")
    a.raw(f"  .amdhsa_accum_offset {acc}")
    a.raw("  .amdhsa_group_segment_fixed_size 0")
    a.raw("  .amdhsa_kernarg_size 112")
    a.raw("  .amdhsa_user_sgpr_count 2")
    a.raw("  .amdhsa_user_sgpr_kernarg_segment_ptr 1")
    a.raw("  .amdhsa_system_sgpr_workgroup_id_x 1")
    a.raw(".end_amdhsa_kernel")


def bf16_round(a, d, s, tmp=None):
    t = tmp if tmp else d
    a(f"v_cvt_pk_bf16_f32 {t}, {s}, {s}")
    a(f"v_and_b32 {d}, 0xffff0000, {t}")


def wave_sum(a, v, t):
    a(f"s_nop 1")
    a(f"v_add_f32_dpp {v}, {v}, {v} quad_perm:[1,0,3,2] row_mask:0xf bank_mask:0xf")
    a(f"s_nop 1")
    a(f"v_add_f32_dpp {v}, {v}, {v} quad_perm:[2,3,0,1] row_mask:0xf bank_mask:0xf")
    a(f"s_nop 1")
    a(f"v_add_f32_dpp {v}, {v}, {v} row_half_mirror row_mask:0xf bank_mask:0xf")
    a(f"s_nop 1")
    a(f"v_add_f32_dpp {v}, {v}, {v} row_mirror row_mask:0xf bank_mask:0xf")
    a(f"v_mov_b32 {t}, {v}")
    a(f"s_nop 1")
    a(f"v_permlane16_swap_b32 {t}, {v}")
    a(f"s_nop 1")
    a(f"v_add_f32 {v}, {v}, {t}")
    a(f"v_mov_b32 {t}, {v}")
    a(f"s_nop 1")
    a(f"v_permlane32_swap_b32 {t}, {v}")
    a(f"s_nop 1")
    a(f"v_add_f32 {v}, {v}, {t}")


def gemv_fma(a, wbase, nrows, act0, act1, acc, tlo, thi):
    for i in range(16):
        a(f"v_mov_b32 v{acc+i}, 0")
    for r in range(nrows):
        for d in range(4):
            w = f"v{wbase+4*r+d}"
            a(f"v_lshlrev_b32 {tlo}, 16, {w}")
            a(f"v_and_b32 {thi}, 0xffff0000, {w}")
            a(f"v_fmac_f32 v{acc+2*d}, {act0[r]}, {tlo}")
            a(f"v_fmac_f32 v{acc+2*d+1}, {act0[r]}, {thi}")
            a(f"v_fmac_f32 v{acc+8+2*d}, {act1[r]}, {tlo}")
            a(f"v_fmac_f32 v{acc+8+2*d+1}, {act1[r]}, {thi}")


def gemv_reduce_lds(a, acc, lds_base):
    a(f"v_lshlrev_b32 v60, 6, v0")
    a(f"v_add_u32 v60, {lds_base}, v60")
    for i in range(4):
        a(f"ds_write_b128 v60, v[{acc+4*i}:{acc+4*i+3}] offset:{16*i}")
    a("s_waitcnt lgkmcnt(0)")
    a("s_barrier")
    a(f"v_lshlrev_b32 v60, 2, v0")
    a(f"v_add_u32 v60, {lds_base}, v60")
    for rg in range(32):
        a(f"ds_read_b32 v{64+rg}, v60 offset:{512*rg}")
    a("s_waitcnt lgkmcnt(0)")
    a("v_add_f32 v40, v64, v65")
    for rg in range(2, 32):
        a(f"v_add_f32 v40, v40, v{64+rg}")


def gen_k1(a):
    name = "k1_kernel"
    kernel_begin(a, name)
    a("""
s_cmp_ge_u32 s2, 192
s_cbranch_scc1 K1_END
s_load_dwordx2 s[4:5], s[0:1], 72
s_load_dwordx2 s[6:7], s[0:1], 80
s_load_dwordx2 s[8:9], s[0:1], 104
s_and_b32 s10, s2, 3
s_lshr_b32 s11, s2, 2
v_lshrrev_b32 v1, 3, v0
v_and_b32 v2, 7, v0
s_lshl_b32 s12, s10, 7
v_lshl_add_u32 v3, v1, 2, s12
v_mul_u32_u24 v4, 0x1800, v3
s_lshl_b32 s13, s11, 7
v_lshl_add_u32 v5, v2, 4, s13
v_add_u32 v4, v4, v5
v_lshlrev_b32 v6, 1, v3
s_waitcnt lgkmcnt(0)
global_load_dwordx4 v[8:11], v4, s[6:7]
v_add_u32 v4, 0x1800, v4
global_load_dwordx4 v[12:15], v4, s[6:7]
v_add_u32 v4, 0x1800, v4
global_load_dwordx4 v[16:19], v4, s[6:7]
v_add_u32 v4, 0x1800, v4
global_load_dwordx4 v[20:23], v4, s[6:7]
""")
    for b in range(2):
        for r in range(4):
            a(f"global_load_ushort v{24+4*b+r}, v6, s[4:5] offset:{1024*b+2*r}")
    a(f"""
s_lshl_b32 s14, s2, 8
v_add_u32 v7, s14, v0
v_cmp_gt_u32 vcc, 0x4000, v7
v_lshlrev_b32 v7, 2, v7
v_add_u32 v7, {WS_ZERO}, v7
v_mov_b32 v41, 0
s_and_saveexec_b64 s[16:17], vcc
s_cbranch_execz K1_NOZERO
global_store_dword v7, v41, s[8:9]
""")
    a.label("K1_NOZERO")
    a("s_mov_b64 exec, s[16:17]")
    a("s_waitcnt vmcnt(0)")
    for i in range(8):
        v = f"v{24+i}"
        a(f"v_lshlrev_b32 {v}, 16, {v}")
        a(f"v_mul_f32 v41, {f32hex(-LOG2E)}, {v}")
        a(f"v_exp_f32 v41, v41")
        a(f"s_nop 0")
        a(f"v_add_f32 v41, 1.0, v41")
        a(f"v_rcp_f32 v41, v41")
        a(f"s_nop 0")
        a(f"v_mul_f32 {v}, {v}, v41")
        bf16_round(a, v, v)
    gemv_fma(a, 8, 4, [f"v{24+r}" for r in range(4)], [f"v{28+r}" for r in range(4)], 44, "v41", "v42")
    gemv_reduce_lds(a, 44, 0)
    a(f"""
v_cmp_gt_u32 vcc, 128, v0
v_lshrrev_b32 v1, 4, v0
v_bfe_u32 v2, v0, 3, 1
v_and_b32 v3, 7, v0
s_mul_i32 s14, s10, {2*3072}
s_lshl_b32 s15, s11, 6
s_add_u32 s14, s14, s15
v_lshl_add_u32 v4, v1, 3, v3
v_mul_u32_u24 v5, 3072, v2
v_add3_u32 v4, v4, v5, s14
v_lshlrev_b32 v4, 2, v4
s_and_saveexec_b64 s[16:17], vcc
s_cbranch_execz K1_END
global_store_dword v4, v40, s[8:9] offset:{WS_MODP}
""")
    a.label("K1_END")
    a("s_endpgm")
    kernel_desc(a, name, 96)


def ln_stats(a, xlo_regs, vsum, vt, out_mean, out_rden):
    a(f"v_add_f32 {vsum}, {xlo_regs[0]}, {xlo_regs[1]}")
    for r in xlo_regs[2:]:
        a(f"v_add_f32 {vsum}, {vsum}, {r}")
    wave_sum(a, vsum, vt)
    a(f"v_mul_f32 {vsum}, {f32hex(1.0/512)}, {vsum}")
    a(f"v_sub_f32 {vt}, {xlo_regs[0]}, {vsum}")
    a(f"v_mul_f32 {out_rden}, {vt}, {vt}")
    for r in xlo_regs[1:]:
        a(f"v_sub_f32 {vt}, {r}, {vsum}")
        a(f"v_fmac_f32 {out_rden}, {vt}, {vt}")
    wave_sum(a, out_rden, vt)
    a(f"v_mul_f32 {out_rden}, {f32hex(1.0/512)}, {out_rden}")
    bf16_round(a, out_rden, out_rden)
    a(f"v_add_f32 {out_rden}, {f32hex(1e-5)}, {out_rden}")
    bf16_round(a, out_rden, out_rden)
    a(f"v_sqrt_f32 {out_rden}, {out_rden}")
    a("s_nop 0")
    bf16_round(a, out_rden, out_rden)
    bf16_round(a, out_mean, vsum)


def gen_k2(a):
    name = "k2_kernel"
    kernel_begin(a, name)
    a("""
s_cmp_ge_u32 s2, 256
s_cbranch_scc1 K2_END
s_load_dwordx2 s[4:5], s[0:1], 0
s_load_dwordx2 s[6:7], s[0:1], 24
s_load_dwordx2 s[8:9], s[0:1], 104
s_and_b32 s10, s2, 3
s_lshr_b32 s11, s2, 2
v_lshrrev_b32 v1, 3, v0
v_and_b32 v2, 7, v0
s_lshl_b32 s12, s10, 7
v_lshl_add_u32 v3, v1, 2, s12
v_lshlrev_b32 v4, 13, v3
s_lshl_b32 s13, s11, 7
v_lshl_add_u32 v5, v2, 4, s13
v_add_u32 v4, v4, v5
v_and_b32 v6, 63, v0
v_lshlrev_b32 v6, 4, v6
s_waitcnt lgkmcnt(0)
global_load_dwordx4 v[8:11], v4, s[6:7]
v_add_u32 v4, 0x2000, v4
global_load_dwordx4 v[12:15], v4, s[6:7]
v_add_u32 v4, 0x2000, v4
global_load_dwordx4 v[16:19], v4, s[6:7]
v_add_u32 v4, 0x2000, v4
global_load_dwordx4 v[20:23], v4, s[6:7]
global_load_dwordx4 v[24:27], v6, s[4:5]
global_load_dwordx4 v[28:31], v6, s[4:5] offset:1024
""")
    a(f"""
v_lshrrev_b32 v32, 7, v0
v_and_b32 v33, 127, v0
v_add_u32 v33, s12, v33
v_mul_u32_u24 v34, 3072, v32
v_add_u32 v34, v34, v33
v_lshlrev_b32 v34, 2, v34
""")
    for ks in range(4):
        base = WS_MODP + ks * 2 * 3072 * 4
        a(f"v_add_u32 v35, {base}, v34")
        a(f"global_load_dword v{36+ks}, v35, s[8:9]")
        a(f"global_load_dword v{40+ks}, v35, s[8:9] offset:2048")
    a("""
v_lshlrev_b32 v35, 1, v33
v_lshl_add_u32 v35, v32, 10, v35
global_load_ushort v44, v35, s[4:5]
s_waitcnt vmcnt(9)
""")
    for b in range(2):
        for d in range(4):
            a(f"v_lshlrev_b32 v{48+8*b+2*d}, 16, v{24+4*b+d}")
            a(f"v_and_b32 v{48+8*b+2*d+1}, 0xffff0000, v{24+4*b+d}")
    ln_stats(a, [f"v{48+i}" for i in range(8)], "v64", "v65", "v66", "v67")
    ln_stats(a, [f"v{56+i}" for i in range(8)], "v64", "v65", "v68", "v69")
    a(f"""
s_waitcnt vmcnt(0)
v_add_f32 v36, v36, v37
v_add_f32 v38, v38, v39
v_add_f32 v36, v36, v38
v_add_f32 v40, v40, v41
v_add_f32 v42, v42, v43
v_add_f32 v40, v40, v42
""")
    bf16_round(a, "v36", "v36")
    bf16_round(a, "v40", "v40")
    a("""
v_cmp_eq_u32 vcc, 0, v32
s_nop 1
v_cndmask_b32 v66, v68, v66, vcc
v_cndmask_b32 v67, v69, v67, vcc
v_lshlrev_b32 v44, 16, v44
v_sub_f32 v44, v44, v66
""")
    bf16_round(a, "v44", "v44")
    a("v_rcp_f32 v67, v67")
    a("s_nop 0")
    a("v_mul_f32 v44, v44, v67")
    bf16_round(a, "v44", "v44")
    a("v_add_f32 v40, 1.0, v40")
    bf16_round(a, "v40", "v40")
    a("v_mul_f32 v44, v44, v40")
    bf16_round(a, "v44", "v44")
    a("v_add_f32 v44, v44, v36")
    bf16_round(a, "v44", "v44")
    a("""
v_lshlrev_b32 v45, 2, v0
ds_write_b32 v45, v44 offset:16384
s_waitcnt lgkmcnt(0)
s_barrier
v_lshlrev_b32 v45, 4, v1
ds_read_b128 v[24:27], v45 offset:16384
ds_read_b128 v[28:31], v45 offset:16896
s_waitcnt lgkmcnt(0)
""")
    gemv_fma(a, 8, 4, [f"v{24+r}" for r in range(4)], [f"v{28+r}" for r in range(4)], 44, "v41", "v42")
    gemv_reduce_lds(a, 44, 0)
    a(f"""
v_cmp_gt_u32 vcc, 128, v0
v_lshrrev_b32 v1, 4, v0
v_bfe_u32 v2, v0, 3, 1
v_and_b32 v3, 7, v0
s_lshl_b32 s14, s10, 13
s_lshl_b32 s15, s11, 6
s_add_u32 s14, s14, s15
v_lshl_add_u32 v4, v1, 3, v3
v_lshlrev_b32 v5, 12, v2
v_add3_u32 v4, v4, v5, s14
v_lshlrev_b32 v4, 2, v4
v_add_u32 v4, {WS_QP}, v4
s_and_saveexec_b64 s[16:17], vcc
s_cbranch_execz K2_END
global_store_dword v4, v40, s[8:9]
""")
    a.label("K2_END")
    a("s_endpgm")
    kernel_desc(a, name, 96)


def xlane_reduce(a, op, v, t):
    a(f"v_mov_b32 {t}, {v}")
    a("s_nop 1")
    a(f"v_permlane16_swap_b32 {t}, {v}")
    a("s_nop 1")
    a(f"{op} {v}, {v}, {t}")
    a(f"v_mov_b32 {t}, {v}")
    a("s_nop 1")
    a(f"v_permlane32_swap_b32 {t}, {v}")
    a("s_nop 1")
    a(f"{op} {v}, {v}, {t}")


def gen_k3(a):
    name = "k3_kernel"
    NIT = 4
    kernel_begin(a, name)
    C = SCALE * LOG2E
    a(f"""
s_cmp_ge_u32 s2, 256
s_cbranch_scc1 K3_END
s_load_dwordx2 s[4:5], s[0:1], 8
s_load_dwordx2 s[8:9], s[0:1], 16
s_load_dwordx2 s[12:13], s[0:1], 104
s_lshr_b32 s14, s2, 4
s_and_b32 s15, s2, 15
v_lshrrev_b32 v1, 6, v0
v_and_b32 v2, 63, v0
v_and_b32 v3, 15, v2
v_lshrrev_b32 v4, 4, v2
s_waitcnt lgkmcnt(0)
s_mov_b32 s6, 0x8000000
s_mov_b32 s7, 0x00020000
s_mov_b32 s10, 0x8000000
s_mov_b32 s11, 0x00020000
""")
    a(f"""
s_lshr_b32 s16, s14, 3
s_and_b32 s17, s14, 7
s_lshl_b32 s16, s16, 12
s_lshl_b32 s17, s17, 9
s_add_u32 s16, s16, s17
v_add_u32 v5, s16, v0
v_lshlrev_b32 v5, 2, v5
v_add_u32 v5, {WS_QP}, v5
global_load_dword v8, v5, s[12:13]
v_add_u32 v5, 0x8000, v5
global_load_dword v9, v5, s[12:13]
v_add_u32 v5, 0x8000, v5
global_load_dword v10, v5, s[12:13]
v_add_u32 v5, 0x8000, v5
global_load_dword v11, v5, s[12:13]
""")
    a(f"""
s_lshl_b32 s18, s14, 23
s_lshl_b32 s19, s15, 19
s_add_u32 s18, s18, s19
v_readfirstlane_b32 s19, v1
s_nop 3
s_lshl_b32 s19, s19, 16
s_add_u32 s18, s18, s19
v_lshlrev_b32 v6, 8, v3
v_lshl_add_u32 v6, v4, 4, v6
v_lshlrev_b32 v7, 10, v4
v_lshl_add_u32 v7, v3, 4, v7
s_nop 1
""")
    KB, VB, SB = 64, 128, 192

    def issue_k(it):
        for t in range(4):
            a(f"s_add_u32 s20, s18, {it*16384 + t*4096}")
            for j in range(4):
                r = KB + 16 * t + 4 * j
                a(f"buffer_load_dwordx4 v[{r}:{r+3}], v6, s[4:7], s20 offen offset:{64*j}")

    def issue_v(it):
        for t in range(4):
            a(f"s_add_u32 s20, s18, {it*16384 + t*4096}")
            for r_ in range(4):
                r = VB + 16 * t + 4 * r_
                a(f"buffer_load_dwordx4 v[{r}:{r+3}], v7, s[8:11], s20 offen offset:{256*r_}")

    issue_k(0)
    issue_v(0)
    a("s_waitcnt vmcnt(32)")
    a("v_add_f32 v8, v8, v9")
    a("v_add_f32 v10, v10, v11")
    a("v_add_f32 v8, v8, v10")
    a("v_cvt_pk_bf16_f32 v8, v8, v8")
    a("v_lshlrev_b32 v5, 1, v0")
    a("ds_write_b16 v5, v8")
    a(f"""
v_lshrrev_b32 v9, 1, v3
v_and_b32 v10, 1, v9
v_lshrrev_b32 v9, 1, v9
v_cmp_eq_u32 vcc, 1, v10
v_mov_b32 v11, 0xffff
v_mov_b32 v12, 0xffff0000
s_nop 1
v_cndmask_b32 v10, v11, v12, vcc
""")
    for jj in range(4):
        a(f"v_cmp_eq_u32 vcc, {jj}, v9")
        a("s_nop 1")
        a(f"v_cndmask_b32 v{232+jj}, 0, v10, vcc")
    a("""
v_mov_b32 v236, 0xff800000
v_mov_b32 v237, 0xff800000
v_mov_b32 v238, 0
v_mov_b32 v239, 0
""")
    for i in range(8):
        a(f"v_mov_b32 v{224+i}, 0")
    a("s_waitcnt lgkmcnt(0)")
    a("s_barrier")
    a("""
v_and_b32 v9, 1, v3
v_lshlrev_b32 v9, 8, v9
v_lshl_add_u32 v9, v4, 4, v9
""")
    for ab in range(2):
        for j in range(4):
            r = 16 + 16 * ab + 4 * j
            a(f"ds_read_b128 v[{r}:{r+3}], v9 offset:{512*ab+64*j}")
    a("s_waitcnt lgkmcnt(0)")

    mreg = ["v236", "v237"]
    lreg = ["v238", "v239"]
    for it in range(NIT):
        last = it == NIT - 1
        a("s_waitcnt vmcnt(16)")
        for t in range(4):
            for ab in range(2):
                sreg = SB + 8 * t + 4 * ab
                for j in range(4):
                    kr = KB + 16 * t + 4 * j
                    qr = 16 + 16 * ab + 4 * j
                    c = "0" if j == 0 else f"v[{sreg}:{sreg+3}]"
                    a(f"v_mfma_f32_16x16x32_bf16 v[{sreg}:{sreg+3}], v[{kr}:{kr+3}], v[{qr}:{qr+3}], {c}")
        if not last:
            issue_k(it + 1)
        a("s_nop 7")
        a("s_nop 1")
        for ab in range(2):
            vals = [f"v{SB+8*t+4*ab+r}" for t in range(4) for r in range(4)]
            tm = f"v{240+ab}"
            a(f"v_max3_f32 {tm}, {vals[0]}, {vals[1]}, {vals[2]}")
            k = 3
            while k + 1 < 16:
                a(f"v_max3_f32 {tm}, {tm}, {vals[k]}, {vals[k+1]}")
                k += 2
            a(f"v_max3_f32 {tm}, {tm}, {vals[15]}, {mreg[ab]}")
            xlane_reduce(a, "v_max_f32", tm, "v242")
            a(f"v_sub_f32 v243, {mreg[ab]}, {tm}")
            a(f"v_mul_f32 v243, {f32hex(C)}, v243")
            a(f"v_exp_f32 v{244+ab}, v243")
            a(f"v_mov_b32 {mreg[ab]}, {tm}")
            a(f"v_mul_f32 v243, {f32hex(C)}, {tm}")
            a(f"s_mov_b32 s21, {f32hex(C)}")
            for v in vals:
                a(f"v_fma_f32 {v}, {v}, s21, -v243")
            for v in vals:
                a(f"v_exp_f32 {v}, {v}")
            a("s_nop 0")
            a(f"v_mul_f32 {lreg[ab]}, {lreg[ab]}, v{244+ab}")
            for v in vals:
                a(f"v_add_f32 {lreg[ab]}, {lreg[ab]}, {v}")
        a("s_nop 1")
        for ab in range(2):
            for r in range(4):
                o = f"v{224+4*ab+r}"
                qp = "[0,0,2,2]" if r % 2 == 0 else "[1,1,3,3]"
                a(f"v_mul_f32_dpp {o}, v{244+ab}, {o} quad_perm:{qp} row_mask:0xf bank_mask:0xf")
        a(f"s_waitcnt vmcnt({16 if not last else 0})")
        k = 0
        for t in range(4):
            for r in range(4):
                vr = VB + 16 * t + 4 * r
                for ab in range(2):
                    p = f"v{SB+8*t+4*ab+r}"
                    ar = 240 + 4 * (k % 3)
                    k += 1
                    a(f"v_cvt_pk_bf16_f32 v252, {p}, {p}")
                    for jj in range(4):
                        a(f"v_and_b32 v{ar+jj}, v252, v{232+jj}")
                    a("s_nop 1")
                    o = 224 + 4 * ab
                    a(f"v_mfma_f32_16x16x32_bf16 v[{o}:{o+3}], v[{ar}:{ar+3}], v[{vr}:{vr+3}], v[{o}:{o+3}]")
        if not last:
            issue_v(it + 1)
        a("s_nop 7")
        a("s_nop 1")
    for ab in range(2):
        xlane_reduce(a, "v_add_f32", lreg[ab], "v242")
    a("""
v_lshlrev_b32 v9, 11, v1
v_lshl_add_u32 v9, v3, 5, v9
v_lshl_add_u32 v9, v4, 3, v9
""")
    for ab in range(2):
        for r in range(4):
            off = 4096 + (2 * ab + (r & 1)) * 512 + (r >> 1) * 4
            a(f"ds_write_b32 v9, v{224+4*ab+r} offset:{off}")
    a("""
v_lshlrev_b32 v10, 5, v1
v_lshl_add_u32 v10, v2, 2, v10
v_cmp_gt_u32 vcc, 2, v2
s_and_saveexec_b64 s[22:23], vcc
""")
    for ab in range(2):
        a(f"ds_write_b32 v10, {mreg[ab]} offset:{1024+8*ab}")
        a(f"ds_write_b32 v10, {lreg[ab]} offset:{1024+16+8*ab}")
    a("""
s_mov_b64 exec, s[22:23]
s_waitcnt lgkmcnt(0)
s_barrier
""")
    a("""
v_lshrrev_b32 v9, 7, v0
v_lshlrev_b32 v10, 2, v9
v_lshlrev_b32 v11, 2, v0
""")
    for w in range(8):
        a(f"ds_read_b32 v{16+w}, v10 offset:{1024+32*w}")
        a(f"ds_read_b32 v{24+w}, v10 offset:{1024+32*w+16}")
        a(f"ds_read_b32 v{32+w}, v11 offset:{4096+2048*w}")
    a("s_waitcnt lgkmcnt(0)")
    a("v_max3_f32 v40, v16, v17, v18")
    a("v_max3_f32 v40, v40, v19, v20")
    a("v_max3_f32 v40, v40, v21, v22")
    a("v_max_f32 v40, v40, v23")
    a("v_mov_b32 v41, 0")
    a("v_mov_b32 v42, 0")
    for w in range(8):
        a(f"v_sub_f32 v43, v{16+w}, v40")
        a(f"v_mul_f32 v43, {f32hex(C)}, v43")
        a(f"v_exp_f32 v43, v43")
        a("s_nop 0")
        a(f"v_fmac_f32 v41, v{24+w}, v43")
        a(f"v_fmac_f32 v42, v{32+w}, v43")
    a(f"""
s_lshl_b32 s24, s2, 11
v_add_u32 v11, s24, v11
global_store_dword v11, v42, s[12:13] offset:0
""".replace("offset:0", ""))
    a.lines.pop()
    a(f"v_add_u32 v11, {WS_PO}, v11")
    a("global_store_dword v11, v42, s[12:13]")
    a(f"""
v_and_b32 v12, 127, v0
v_cmp_eq_u32 vcc, 0, v12
s_lshl_b32 s24, s2, 5
v_lshl_add_u32 v12, v9, 2, s24
v_add_u32 v12, {WS_PML}, v12
s_and_saveexec_b64 s[22:23], vcc
global_store_dword v12, v40, s[12:13]
global_store_dword v12, v41, s[12:13] offset:16
""")
    a.label("K3_END")
    a("s_endpgm")
    kernel_desc(a, name, 256)


def gen_k4(a):
    name = "k4_kernel"
    kernel_begin(a, name)
    C = SCALE * LOG2E
    a(f"""
s_cmp_ge_u32 s2, 256
s_cbranch_scc1 K4_END
s_load_dwordx2 s[6:7], s[0:1], 32
s_load_dwordx2 s[8:9], s[0:1], 104
s_and_b32 s10, s2, 31
s_lshr_b32 s11, s2, 5
v_lshrrev_b32 v1, 3, v0
v_and_b32 v2, 7, v0
s_lshl_b32 s12, s10, 7
v_lshl_add_u32 v3, v1, 2, s12
v_lshlrev_b32 v4, 10, v3
s_lshl_b32 s13, s11, 7
v_lshl_add_u32 v5, v2, 4, s13
v_add_u32 v4, v4, v5
s_waitcnt lgkmcnt(0)
global_load_dwordx4 v[8:11], v4, s[6:7]
global_load_dwordx4 v[12:15], v4, s[6:7] offset:1024
global_load_dwordx4 v[16:19], v4, s[6:7] offset:2048
global_load_dwordx4 v[20:23], v4, s[6:7] offset:3072
""")
    a(f"""
v_lshrrev_b32 v32, 7, v0
v_and_b32 v33, 127, v0
s_lshr_b32 s14, s10, 2
s_and_b32 s15, s10, 3
v_lshl_add_u32 v34, v32, 3, s14
v_lshlrev_b32 v35, 9, v34
s_lshl_b32 s16, s15, 2
v_add_u32 v35, s16, v35
v_add_u32 v35, {WS_PML}, v35
v_lshlrev_b32 v36, 15, v34
s_lshl_b32 s16, s15, 9
v_lshl_add_u32 v36, v33, 2, v36
v_add_u32 v36, s16, v36
v_add_u32 v36, {WS_PO}, v36
""")
    for s in range(16):
        a(f"global_load_dword v{64+s}, v35, s[8:9] offset:{32*s}")
        a(f"global_load_dword v{80+s}, v35, s[8:9] offset:{32*s+16}")
    for s in range(16):
        a(f"global_load_dword v{96+s}, v36, s[8:9]")
        a(f"v_add_u32 v36, 0x800, v36")
    a("s_waitcnt vmcnt(0)")
    a("v_max3_f32 v40, v64, v65, v66")
    for s in range(3, 15, 2):
        a(f"v_max3_f32 v40, v40, v{64+s}, v{65+s}")
    a("v_max_f32 v40, v40, v79")
    a("v_mov_b32 v41, 0")
    a("v_mov_b32 v42, 0")
    for s in range(16):
        a(f"v_sub_f32 v43, v{64+s}, v40")
        a(f"v_mul_f32 v43, {f32hex(C)}, v43")
        a(f"v_exp_f32 v43, v43")
        a("s_nop 0")
        a(f"v_fmac_f32 v41, v{80+s}, v43")
        a(f"v_fmac_f32 v42, v{96+s}, v43")
    a("v_rcp_f32 v41, v41")
    a("s_nop 0")
    a("v_mul_f32 v42, v42, v41")
    bf16_round(a, "v42", "v42")
    a("""
v_lshlrev_b32 v45, 2, v0
ds_write_b32 v45, v42 offset:16384
s_waitcnt lgkmcnt(0)
s_barrier
v_lshlrev_b32 v45, 4, v1
ds_read_b128 v[24:27], v45 offset:16384
ds_read_b128 v[28:31], v45 offset:16896
s_waitcnt lgkmcnt(0)
""")
    gemv_fma(a, 8, 4, [f"v{24+r}" for r in range(4)], [f"v{28+r}" for r in range(4)], 44, "v41", "v42")
    gemv_reduce_lds(a, 44, 0)
    a(f"""
v_cmp_gt_u32 vcc, 128, v0
v_lshrrev_b32 v1, 4, v0
v_bfe_u32 v2, v0, 3, 1
v_and_b32 v3, 7, v0
s_lshl_b32 s15, s11, 6
v_lshl_add_u32 v4, v1, 3, v3
v_lshlrev_b32 v5, 9, v2
v_add3_u32 v4, v4, v5, s15
v_lshlrev_b32 v4, 2, v4
v_add_u32 v4, {WS_ACC1}, v4
s_and_saveexec_b64 s[16:17], vcc
s_cbranch_execz K4_END
global_atomic_add_f32 v4, v40, s[8:9]
""")
    a.label("K4_END")
    a("s_endpgm")
    kernel_desc(a, name, 128)


def gen_k5(a):
    name = "k5_kernel"
    kernel_begin(a, name)
    a(f"""
s_cmp_ge_u32 s2, 224
s_cbranch_scc1 K5_END
s_load_dwordx2 s[4:5], s[0:1], 0
s_load_dwordx2 s[6:7], s[0:1], 48
s_load_dwordx2 s[18:19], s[0:1], 56
s_load_dwordx2 s[8:9], s[0:1], 104
s_and_b32 s10, s2, 7
s_lshr_b32 s11, s2, 3
v_lshrrev_b32 v1, 3, v0
v_and_b32 v2, 7, v0
s_lshl_b32 s12, s10, 6
v_lshl_add_u32 v3, v1, 1, s12
v_mul_u32_u24 v4, 0xe00, v3
s_lshl_b32 s13, s11, 7
v_lshl_add_u32 v5, v2, 4, s13
v_add_u32 v4, v4, v5
s_waitcnt lgkmcnt(0)
global_load_dwordx4 v[8:11], v4, s[6:7]
global_load_dwordx4 v[12:15], v4, s[6:7] offset:3584
global_load_dwordx4 v[16:19], v4, s[18:19]
global_load_dwordx4 v[20:23], v4, s[18:19] offset:3584
""")
    a(f"""
v_and_b32 v6, 63, v0
v_lshlrev_b32 v7, 4, v6
global_load_dwordx4 v[24:27], v7, s[4:5]
global_load_dwordx4 v[28:31], v7, s[4:5] offset:1024
v_lshlrev_b32 v7, 5, v6
v_add_u32 v7, {WS_ACC1}, v7
global_load_dwordx4 v[64:67], v7, s[8:9]
global_load_dwordx4 v[68:71], v7, s[8:9] offset:16
global_load_dwordx4 v[72:75], v7, s[8:9] offset:2048
global_load_dwordx4 v[76:79], v7, s[8:9] offset:2064
""")
    a("v_lshlrev_b32 v7, 5, v6")
    for which, dst in ((1024, 80), (1536, 96), (2048, 112)):
        for i in range(16):
            a(f"v_mov_b32 v{dst+i}, 0")
    a("s_waitcnt vmcnt(0)")
    for ks in range(4):
        for which, dst in ((1024, 80), (1536, 96), (2048, 112)):
            for b in range(2):
                off = WS_MODP + (ks * 2 * 3072 + b * 3072 + which) * 4
                a(f"v_add_u32 v48, {off}, v7")
                a(f"global_load_dwordx4 v[52:55], v48, s[8:9]")
                a(f"global_load_dwordx4 v[56:59], v48, s[8:9] offset:16")
                a("s_waitcnt vmcnt(0)")
                for e in range(8):
                    a(f"v_add_f32 v{dst+8*b+e}, v{dst+8*b+e}, v{52+e}")
    for i in range(48):
        bf16_round(a, f"v{80+i}", f"v{80+i}")
    for b in range(2):
        for d in range(4):
            a(f"v_lshlrev_b32 v{128+8*b+2*d}, 16, v{24+4*b+d}")
            a(f"v_and_b32 v{128+8*b+2*d+1}, 0xffff0000, v{24+4*b+d}")
    for i in range(16):
        bf16_round(a, f"v{64+i}", f"v{64+i}")
        a(f"v_mul_f32 v{64+i}, v{80+i}, v{64+i}")
        bf16_round(a, f"v{64+i}", f"v{64+i}")
        a(f"v_add_f32 v{128+i}, v{128+i}, v{64+i}")
        bf16_round(a, f"v{128+i}", f"v{128+i}")
    a(f"""
v_lshlrev_b32 v7, 5, v6
v_add_u32 v7, {WS_X1}, v7
v_cmp_gt_u32 vcc, 64, v0
s_cmp_eq_u32 s2, 0
s_cselect_b64 s[16:17], vcc, 0
s_and_saveexec_b64 s[16:17], s[16:17]
s_cbranch_execz K5_NOX1
global_store_dwordx4 v7, v[128:131], s[8:9]
global_store_dwordx4 v7, v[132:135], s[8:9] offset:16
global_store_dwordx4 v7, v[136:139], s[8:9] offset:2048
global_store_dwordx4 v7, v[140:143], s[8:9] offset:2064
""")
    a.label("K5_NOX1")
    a("s_mov_b64 exec, s[16:17]")
    ln_stats(a, [f"v{128+i}" for i in range(8)], "v64", "v65", "v66", "v67")
    ln_stats(a, [f"v{136+i}" for i in range(8)], "v64", "v65", "v68", "v69")
    a("v_rcp_f32 v67, v67")
    a("v_rcp_f32 v69, v69")
    a("s_nop 0")
    for b in range(2):
        for e in range(8):
            x = f"v{128+8*b+e}"
            a(f"v_sub_f32 {x}, {x}, v{66+2*b}")
            bf16_round(a, x, x)
            a(f"v_mul_f32 {x}, {x}, v{67+2*b}")
            bf16_round(a, x, x)
            cbv = f"v{112+8*b+e}"
            a(f"v_add_f32 {cbv}, 1.0, {cbv}")
            bf16_round(a, cbv, cbv)
            a(f"v_mul_f32 {x}, {x}, {cbv}")
            bf16_round(a, x, x)
            a(f"v_add_f32 {x}, {x}, v{96+8*b+e}")
            bf16_round(a, x, x)
    a("""
v_lshlrev_b32 v7, 5, v6
ds_write_b128 v7, v[128:131] offset:16384
ds_write_b128 v7, v[132:135] offset:16400
ds_write_b128 v7, v[136:139] offset:18432
ds_write_b128 v7, v[140:143] offset:18448
s_waitcnt lgkmcnt(0)
s_barrier
v_lshlrev_b32 v7, 2, v3
ds_read_b64 v[24:25], v7 offset:16384
ds_read_b64 v[26:27], v7 offset:18432
s_waitcnt lgkmcnt(0)
""")
    gemv_fma(a, 8, 2, ["v24", "v25"], ["v26", "v27"], 44, "v41", "v42")
    gemv_fma(a, 16, 2, ["v24", "v25"], ["v26", "v27"], 144, "v41", "v42")
    gemv_reduce_lds(a, 44, 0)
    a("v_mov_b32 v160, v40")
    a("s_barrier")
    gemv_reduce_lds(a, 144, 0)
    a(f"""
v_cmp_gt_u32 vcc, 128, v0
v_lshrrev_b32 v1, 4, v0
v_bfe_u32 v2, v0, 3, 1
v_and_b32 v3, 7, v0
s_lshl_b32 s15, s11, 6
v_lshl_add_u32 v4, v1, 3, v3
v_mul_u32_u24 v5, 1792, v2
v_add3_u32 v4, v4, v5, s15
v_lshlrev_b32 v4, 2, v4
v_add_u32 v4, {WS_GU}, v4
v_add_u32 v5, {1792*2*4}, v4
s_and_saveexec_b64 s[16:17], vcc
s_cbranch_execz K5_END
global_atomic_add_f32 v4, v160, s[8:9]
global_atomic_add_f32 v5, v40, s[8:9]
""")
    a.label("K5_END")
    a("s_endpgm")
    kernel_desc(a, name, 168)


def gen_k6(a):
    name = "k6_kernel"
    kernel_begin(a, name)
    a(f"""
s_cmp_ge_u32 s2, 224
s_cbranch_scc1 K6_END
s_load_dwordx2 s[6:7], s[0:1], 64
s_load_dwordx2 s[8:9], s[0:1], 104
s_lshr_b32 s11, s2, 5
s_mul_i32 s13, s11, 32
s_sub_u32 s10, s2, s13
s_cmp_ge_u32 s10, 28
""")
    a.lines.pop()
    a.lines.pop(); a.lines.pop(); a.lines.pop()
    a(f"""
s_and_b32 s11, s2, 7
s_lshr_b32 s10, s2, 3
v_lshrrev_b32 v1, 3, v0
v_and_b32 v2, 7, v0
s_lshl_b32 s12, s10, 6
v_lshl_add_u32 v3, v1, 1, s12
v_lshlrev_b32 v4, 10, v3
s_lshl_b32 s13, s11, 7
v_lshl_add_u32 v5, v2, 4, s13
v_add_u32 v4, v4, v5
v_lshlrev_b32 v6, 2, v3
v_add_u32 v6, {WS_GU}, v6
v_add_u32 v7, {1792*2*4}, v6
s_waitcnt lgkmcnt(0)
global_load_dwordx4 v[8:11], v4, s[6:7]
global_load_dwordx4 v[12:15], v4, s[6:7] offset:1024
global_load_dwordx2 v[24:25], v6, s[8:9]
global_load_dwordx2 v[28:29], v7, s[8:9]
v_add_u32 v6, {1792*4}, v6
v_add_u32 v7, {1792*4}, v7
global_load_dwordx2 v[26:27], v6, s[8:9]
global_load_dwordx2 v[30:31], v7, s[8:9]
s_waitcnt vmcnt(0)
""")
    for i in range(4):
        bf16_round(a, f"v{24+i}", f"v{24+i}")
        bf16_round(a, f"v{28+i}", f"v{28+i}")
        a(f"v_mul_f32 v{24+i}, v{24+i}, v{28+i}")
        bf16_round(a, f"v{24+i}", f"v{24+i}")
    gemv_fma(a, 8, 2, ["v24", "v25"], ["v26", "v27"], 44, "v41", "v42")
    gemv_reduce_lds(a, 44, 0)
    a(f"""
v_cmp_gt_u32 vcc, 128, v0
v_lshrrev_b32 v1, 4, v0
v_bfe_u32 v2, v0, 3, 1
v_and_b32 v3, 7, v0
s_lshl_b32 s15, s11, 6
v_lshl_add_u32 v4, v1, 3, v3
v_lshlrev_b32 v5, 9, v2
v_add3_u32 v4, v4, v5, s15
v_lshlrev_b32 v4, 2, v4
v_add_u32 v4, {WS_ACC2}, v4
s_and_saveexec_b64 s[16:17], vcc
s_cbranch_execz K6_END
global_atomic_add_f32 v4, v40, s[8:9]
""")
    a.label("K6_END")
    a("s_endpgm")
    kernel_desc(a, name, 96)


def gen_k7(a):
    name = "k7_kernel"
    kernel_begin(a, name)
    a(f"""
s_cmp_ge_u32 s2, 4
s_cbranch_scc1 K7_END
s_load_dwordx2 s[6:7], s[0:1], 88
s_load_dwordx2 s[8:9], s[0:1], 104
s_lshl_b32 s10, s2, 8
v_add_u32 v1, s10, v0
v_lshlrev_b32 v2, 2, v1
v_lshrrev_b32 v3, 9, v1
v_and_b32 v4, 511, v1
v_mul_u32_u24 v3, 3072, v3
v_add3_u32 v3, v3, v4, 0
v_add_u32 v3, 2560, v3
v_lshlrev_b32 v3, 2, v3
s_waitcnt lgkmcnt(0)
v_add_u32 v5, {WS_ACC2}, v2
global_load_dword v8, v5, s[8:9]
v_add_u32 v5, {WS_X1}, v2
global_load_dword v9, v5, s[8:9]
""")
    for ks in range(4):
        a(f"v_add_u32 v5, {WS_MODP + ks*2*3072*4}, v3")
        a(f"global_load_dword v{10+ks}, v5, s[8:9]")
    a("""
s_waitcnt vmcnt(0)
v_add_f32 v10, v10, v11
v_add_f32 v12, v12, v13
v_add_f32 v10, v10, v12
""")
    bf16_round(a, "v10", "v10")
    bf16_round(a, "v8", "v8")
    a("v_mul_f32 v8, v8, v10")
    bf16_round(a, "v8", "v8")
    a("v_add_f32 v8, v8, v9")
    a("v_cvt_pk_bf16_f32 v8, v8, v8")
    a("v_lshlrev_b32 v1, 1, v1")
    a("global_store_short v1, v8, s[6:7]")
    a.label("K7_END")
    a("s_endpgm")
    kernel_desc(a, name, 32)


def main():
    a = Asm()
    hdr = open(f"cdna_kernels/{NAME}.s.ref").read().split("\n")
    for ln in hdr:
        if ln.startswith("; @launch"):
            continue
        if not ln.startswith(";"):
            break
        a.raw(ln)
    a.raw("; @launch kernel=k1_kernel grid=(192,1,1) block=(256,1,1) lds=20480")
    a.raw("; @launch kernel=k2_kernel grid=(256,1,1) block=(256,1,1) lds=20480")
    a.raw("; @launch kernel=k3_kernel grid=(256,1,1) block=(512,1,1) lds=20480")
    a.raw("; @launch kernel=k4_kernel grid=(256,1,1) block=(256,1,1) lds=20480")
    a.raw("; @launch kernel=k5_kernel grid=(224,1,1) block=(256,1,1) lds=24576")
    a.raw("; @launch kernel=k6_kernel grid=(224,1,1) block=(256,1,1) lds=20480")
    a.raw("; @launch kernel=k7_kernel grid=(4,1,1) block=(256,1,1) lds=0")
    a.raw('.amdgcn_target "amdgcn-amd-amdhsa--gfx950"')
    gen_k1(a)
    gen_k2(a)
    gen_k3(a)
    gen_k4(a)
    gen_k5(a)
    gen_k6(a)
    gen_k7(a)
    out = sys.argv[1] if len(sys.argv) > 1 else f"cdna_kernels/{NAME}.s"
    open(out, "w").write(a.text())


if __name__ == "__main__":
    main()
```

```python
import sys

NAME = "adaLN_cond__gqa_block_cached__glu_gated_bilinear__decode"

WS_MODP = 0x0000
WS_QP   = 0x20000
WS_PO   = 0x40000
WS_PML  = 0xC0000
WS_ZERO = 0xC4000
WS_ACC1 = 0xC4000
WS_GU   = 0xC8000
WS_ACC2 = 0xD0000
WS_X1   = 0xD4000
WS_MOD  = 0xD8000
NT = ''

LOG2E = 1.4426950408889634
SCALE = 128 ** -0.5


def f32hex(x):
    import struct
    return "0x%08x" % struct.unpack("<I", struct.pack("<f", x))[0]


class Asm:
    def __init__(self):
        self.lines = []

    def __call__(self, s):
        for ln in s.strip("\n").split("\n"):
            self.lines.append("    " + ln.strip())

    def label(self, s):
        self.lines.append(s + ":")

    def raw(self, s):
        self.lines.append(s)

    def text(self):
        return "\n".join(self.lines) + "\n"


def kernel_begin(a, name):
    a.raw(".text")
    a.raw(f".globl {name}")
    a.raw(".p2align 8")
    a.raw(f".type {name},@function")
    a.label(name)


def kernel_desc(a, name, vgpr, sgpr=102):
    acc = (vgpr + 3) // 4 * 4
    a.raw('.section .rodata,"a"')
    a.raw(".p2align 6")
    a.raw(f".amdhsa_kernel {name}")
    a.raw(f"  .amdhsa_next_free_vgpr {vgpr}")
    a.raw(f"  .amdhsa_next_free_sgpr {sgpr}")
    a.raw(f"  .amdhsa_accum_offset {acc}")
    a.raw("  .amdhsa_group_segment_fixed_size 0")
    a.raw("  .amdhsa_kernarg_size 112")
    a.raw("  .amdhsa_user_sgpr_count 2")
    a.raw("  .amdhsa_user_sgpr_kernarg_segment_ptr 1")
    a.raw("  .amdhsa_system_sgpr_workgroup_id_x 1")
    a.raw(".end_amdhsa_kernel")


def bf16_round(a, d, s, tmp=None):
    t = tmp if tmp else d
    a(f"v_cvt_pk_bf16_f32 {t}, {s}, {s}")
    a(f"v_and_b32 {d}, 0xffff0000, {t}")


def wave_sum(a, v, t):
    a(f"s_nop 1")
    a(f"v_add_f32_dpp {v}, {v}, {v} quad_perm:[1,0,3,2] row_mask:0xf bank_mask:0xf")
    a(f"s_nop 1")
    a(f"v_add_f32_dpp {v}, {v}, {v} quad_perm:[2,3,0,1] row_mask:0xf bank_mask:0xf")
    a(f"s_nop 1")
    a(f"v_add_f32_dpp {v}, {v}, {v} row_half_mirror row_mask:0xf bank_mask:0xf")
    a(f"s_nop 1")
    a(f"v_add_f32_dpp {v}, {v}, {v} row_mirror row_mask:0xf bank_mask:0xf")
    a(f"v_mov_b32 {t}, {v}")
    a(f"s_nop 1")
    a(f"v_permlane16_swap_b32 {t}, {v}")
    a(f"s_nop 1")
    a(f"v_add_f32 {v}, {v}, {t}")
    a(f"v_mov_b32 {t}, {v}")
    a(f"s_nop 1")
    a(f"v_permlane32_swap_b32 {t}, {v}")
    a(f"s_nop 1")
    a(f"v_add_f32 {v}, {v}, {t}")


def gemv_fma(a, wbase, nrows, act0, act1, acc, tlo, thi):
    for i in range(16):
        a(f"v_mov_b32 v{acc+i}, 0")
    for r in range(nrows):
        for d in range(4):
            w = f"v{wbase+4*r+d}"
            a(f"v_lshlrev_b32 {tlo}, 16, {w}")
            a(f"v_and_b32 {thi}, 0xffff0000, {w}")
            a(f"v_fmac_f32 v{acc+2*d}, {act0[r]}, {tlo}")
            a(f"v_fmac_f32 v{acc+2*d+1}, {act0[r]}, {thi}")
            a(f"v_fmac_f32 v{acc+8+2*d}, {act1[r]}, {tlo}")
            a(f"v_fmac_f32 v{acc+8+2*d+1}, {act1[r]}, {thi}")


def gemv_reduce_lds(a, acc, lds_base):
    a(f"v_lshlrev_b32 v60, 6, v0")
    a(f"v_add_u32 v60, {lds_base}, v60")
    for i in range(4):
        a(f"ds_write_b128 v60, v[{acc+4*i}:{acc+4*i+3}] offset:{16*i}")
    a("s_waitcnt lgkmcnt(0)")
    a("s_barrier")
    a(f"v_lshlrev_b32 v60, 2, v0")
    a(f"v_add_u32 v60, {lds_base}, v60")
    for rg in range(32):
        a(f"ds_read_b32 v{64+rg}, v60 offset:{512*rg}")
    a("s_waitcnt lgkmcnt(0)")
    a("v_add_f32 v40, v64, v65")
    for rg in range(2, 32):
        a(f"v_add_f32 v40, v40, v{64+rg}")


def gen_k1(a):
    name = "k1_kernel"
    kernel_begin(a, name)
    a("""
s_cmp_ge_u32 s2, 192
s_cbranch_scc1 K1_END
s_load_dwordx2 s[4:5], s[0:1], 72
s_load_dwordx2 s[6:7], s[0:1], 80
s_load_dwordx2 s[8:9], s[0:1], 104
s_and_b32 s10, s2, 3
s_lshr_b32 s11, s2, 2
v_lshrrev_b32 v1, 3, v0
v_and_b32 v2, 7, v0
s_lshl_b32 s12, s10, 7
v_lshl_add_u32 v3, v1, 2, s12
v_mul_u32_u24 v4, 0x1800, v3
s_lshl_b32 s13, s11, 7
v_lshl_add_u32 v5, v2, 4, s13
v_add_u32 v4, v4, v5
v_lshlrev_b32 v6, 1, v3
s_waitcnt lgkmcnt(0)
global_load_dwordx4 v[8:11], v4, s[6:7]
v_add_u32 v4, 0x1800, v4
global_load_dwordx4 v[12:15], v4, s[6:7]
v_add_u32 v4, 0x1800, v4
global_load_dwordx4 v[16:19], v4, s[6:7]
v_add_u32 v4, 0x1800, v4
global_load_dwordx4 v[20:23], v4, s[6:7]
""")
    for b in range(2):
        for r in range(4):
            a(f"global_load_ushort v{24+4*b+r}, v6, s[4:5] offset:{1024*b+2*r}")
    a(f"""
s_lshl_b32 s14, s2, 8
v_add_u32 v7, s14, v0
v_cmp_gt_u32 vcc, 0x4000, v7
v_lshlrev_b32 v7, 2, v7
v_add_u32 v7, {WS_ZERO}, v7
v_mov_b32 v41, 0
s_and_saveexec_b64 s[16:17], vcc
s_cbranch_execz K1_NOZERO
global_store_dword v7, v41, s[8:9]
""")
    a.label("K1_NOZERO")
    a("s_mov_b64 exec, s[16:17]")
    a("s_waitcnt vmcnt(0)")
    for i in range(8):
        v = f"v{24+i}"
        a(f"v_lshlrev_b32 {v}, 16, {v}")
        a(f"v_mul_f32 v41, {f32hex(-LOG2E)}, {v}")
        a(f"v_exp_f32 v41, v41")
        a(f"s_nop 0")
        a(f"v_add_f32 v41, 1.0, v41")
        a(f"v_rcp_f32 v41, v41")
        a(f"s_nop 0")
        a(f"v_mul_f32 {v}, {v}, v41")
        bf16_round(a, v, v)
    gemv_fma(a, 8, 4, [f"v{24+r}" for r in range(4)], [f"v{28+r}" for r in range(4)], 44, "v41", "v42")
    gemv_reduce_lds(a, 44, 0)
    a(f"""
v_cmp_gt_u32 vcc, 128, v0
v_lshrrev_b32 v1, 4, v0
v_bfe_u32 v2, v0, 3, 1
v_and_b32 v3, 7, v0
s_mul_i32 s14, s10, {2*3072}
s_lshl_b32 s15, s11, 6
s_add_u32 s14, s14, s15
v_lshl_add_u32 v4, v1, 3, v3
v_mul_u32_u24 v5, 3072, v2
v_add3_u32 v4, v4, v5, s14
v_lshlrev_b32 v4, 2, v4
s_and_saveexec_b64 s[16:17], vcc
s_cbranch_execz K1_END
global_store_dword v4, v40, s[8:9] offset:{WS_MODP}
""")
    a.label("K1_END")
    a("s_endpgm")
    kernel_desc(a, name, 96)


def ln_stats(a, xlo_regs, vsum, vt, out_mean, out_rden):
    a(f"v_add_f32 {vsum}, {xlo_regs[0]}, {xlo_regs[1]}")
    for r in xlo_regs[2:]:
        a(f"v_add_f32 {vsum}, {vsum}, {r}")
    wave_sum(a, vsum, vt)
    a(f"v_mul_f32 {vsum}, {f32hex(1.0/512)}, {vsum}")
    a(f"v_sub_f32 {vt}, {xlo_regs[0]}, {vsum}")
    a(f"v_mul_f32 {out_rden}, {vt}, {vt}")
    for r in xlo_regs[1:]:
        a(f"v_sub_f32 {vt}, {r}, {vsum}")
        a(f"v_fmac_f32 {out_rden}, {vt}, {vt}")
    wave_sum(a, out_rden, vt)
    a(f"v_mul_f32 {out_rden}, {f32hex(1.0/512)}, {out_rden}")
    bf16_round(a, out_rden, out_rden)
    a(f"v_add_f32 {out_rden}, {f32hex(1e-5)}, {out_rden}")
    bf16_round(a, out_rden, out_rden)
    a(f"v_sqrt_f32 {out_rden}, {out_rden}")
    a("s_nop 0")
    bf16_round(a, out_rden, out_rden)
    bf16_round(a, out_mean, vsum)


def gen_k2(a):
    name = "k2_kernel"
    kernel_begin(a, name)
    a("""
s_cmp_ge_u32 s2, 256
s_cbranch_scc1 K2_END
s_load_dwordx2 s[4:5], s[0:1], 0
s_load_dwordx2 s[6:7], s[0:1], 24
s_load_dwordx2 s[8:9], s[0:1], 104
s_and_b32 s10, s2, 3
s_lshr_b32 s11, s2, 2
v_lshrrev_b32 v1, 3, v0
v_and_b32 v2, 7, v0
s_lshl_b32 s12, s10, 7
v_lshl_add_u32 v3, v1, 2, s12
v_lshlrev_b32 v4, 13, v3
s_lshl_b32 s13, s11, 7
v_lshl_add_u32 v5, v2, 4, s13
v_add_u32 v4, v4, v5
v_and_b32 v6, 63, v0
v_lshlrev_b32 v6, 4, v6
s_waitcnt lgkmcnt(0)
global_load_dwordx4 v[8:11], v4, s[6:7]
v_add_u32 v4, 0x2000, v4
global_load_dwordx4 v[12:15], v4, s[6:7]
v_add_u32 v4, 0x2000, v4
global_load_dwordx4 v[16:19], v4, s[6:7]
v_add_u32 v4, 0x2000, v4
global_load_dwordx4 v[20:23], v4, s[6:7]
global_load_dwordx4 v[24:27], v6, s[4:5]
global_load_dwordx4 v[28:31], v6, s[4:5] offset:1024
""")
    a(f"""
v_lshrrev_b32 v32, 7, v0
v_and_b32 v33, 127, v0
v_add_u32 v33, s12, v33
v_mul_u32_u24 v34, 3072, v32
v_add_u32 v34, v34, v33
v_lshlrev_b32 v34, 2, v34
""")
    for ks in range(4):
        base = WS_MODP + ks * 2 * 3072 * 4
        a(f"v_add_u32 v35, {base}, v34")
        a(f"global_load_dword v{36+ks}, v35, s[8:9]")
        a(f"global_load_dword v{40+ks}, v35, s[8:9] offset:2048")
    a("""
v_lshlrev_b32 v35, 1, v33
v_lshl_add_u32 v35, v32, 10, v35
global_load_ushort v44, v35, s[4:5]
s_waitcnt vmcnt(9)
""")
    for b in range(2):
        for d in range(4):
            a(f"v_lshlrev_b32 v{48+8*b+2*d}, 16, v{24+4*b+d}")
            a(f"v_and_b32 v{48+8*b+2*d+1}, 0xffff0000, v{24+4*b+d}")
    ln_stats(a, [f"v{48+i}" for i in range(8)], "v64", "v65", "v66", "v67")
    ln_stats(a, [f"v{56+i}" for i in range(8)], "v64", "v65", "v68", "v69")
    a(f"""
s_waitcnt vmcnt(0)
v_add_f32 v36, v36, v37
v_add_f32 v38, v38, v39
v_add_f32 v36, v36, v38
v_add_f32 v40, v40, v41
v_add_f32 v42, v42, v43
v_add_f32 v40, v40, v42
""")
    bf16_round(a, "v36", "v36")
    bf16_round(a, "v40", "v40")
    a("""
v_cmp_eq_u32 vcc, 0, v32
s_nop 1
v_cndmask_b32 v66, v68, v66, vcc
v_cndmask_b32 v67, v69, v67, vcc
v_lshlrev_b32 v44, 16, v44
v_sub_f32 v44, v44, v66
""")
    bf16_round(a, "v44", "v44")
    a("v_rcp_f32 v67, v67")
    a("s_nop 0")
    a("v_mul_f32 v44, v44, v67")
    bf16_round(a, "v44", "v44")
    a("v_add_f32 v40, 1.0, v40")
    bf16_round(a, "v40", "v40")
    a("v_mul_f32 v44, v44, v40")
    bf16_round(a, "v44", "v44")
    a("v_add_f32 v44, v44, v36")
    bf16_round(a, "v44", "v44")
    a("""
v_lshlrev_b32 v45, 2, v0
ds_write_b32 v45, v44 offset:16384
s_waitcnt lgkmcnt(0)
s_barrier
v_lshlrev_b32 v45, 4, v1
ds_read_b128 v[24:27], v45 offset:16384
ds_read_b128 v[28:31], v45 offset:16896
s_waitcnt lgkmcnt(0)
""")
    gemv_fma(a, 8, 4, [f"v{24+r}" for r in range(4)], [f"v{28+r}" for r in range(4)], 44, "v41", "v42")
    gemv_reduce_lds(a, 44, 0)
    a(f"""
v_cmp_gt_u32 vcc, 128, v0
v_lshrrev_b32 v1, 4, v0
v_bfe_u32 v2, v0, 3, 1
v_and_b32 v3, 7, v0
s_lshl_b32 s14, s10, 13
s_lshl_b32 s15, s11, 6
s_add_u32 s14, s14, s15
v_lshl_add_u32 v4, v1, 3, v3
v_lshlrev_b32 v5, 12, v2
v_add3_u32 v4, v4, v5, s14
v_lshlrev_b32 v4, 2, v4
v_add_u32 v4, {WS_QP}, v4
s_and_saveexec_b64 s[16:17], vcc
s_cbranch_execz K2_END
global_store_dword v4, v40, s[8:9]
""")
    a.label("K2_END")
    a("s_endpgm")
    kernel_desc(a, name, 96)


def xlane_reduce(a, op, v, t):
    a(f"v_mov_b32 {t}, {v}")
    a("s_nop 1")
    a(f"v_permlane16_swap_b32 {t}, {v}")
    a("s_nop 1")
    a(f"{op} {v}, {v}, {t}")
    a(f"v_mov_b32 {t}, {v}")
    a("s_nop 1")
    a(f"v_permlane32_swap_b32 {t}, {v}")
    a("s_nop 1")
    a(f"{op} {v}, {v}, {t}")


def gen_k3(a):
    name = "k3_kernel"
    NIT = 4
    kernel_begin(a, name)
    C = SCALE * LOG2E
    a(f"""
s_cmp_ge_u32 s2, 256
s_cbranch_scc1 K3_END
s_load_dwordx2 s[4:5], s[0:1], 8
s_load_dwordx2 s[8:9], s[0:1], 16
s_load_dwordx2 s[12:13], s[0:1], 104
s_lshr_b32 s14, s2, 4
s_and_b32 s15, s2, 15
v_lshrrev_b32 v1, 6, v0
v_and_b32 v2, 63, v0
v_and_b32 v3, 15, v2
v_lshrrev_b32 v4, 4, v2
s_waitcnt lgkmcnt(0)
s_mov_b32 s6, 0x8000000
s_mov_b32 s7, 0x00020000
s_mov_b32 s10, 0x8000000
s_mov_b32 s11, 0x00020000
""")
    a(f"""
s_lshr_b32 s16, s14, 3
s_and_b32 s17, s14, 7
s_lshl_b32 s16, s16, 12
s_lshl_b32 s17, s17, 9
s_add_u32 s16, s16, s17
v_add_u32 v5, s16, v0
v_lshlrev_b32 v5, 2, v5
v_add_u32 v5, {WS_QP}, v5
global_load_dword v8, v5, s[12:13]
v_add_u32 v5, 0x8000, v5
global_load_dword v9, v5, s[12:13]
v_add_u32 v5, 0x8000, v5
global_load_dword v10, v5, s[12:13]
v_add_u32 v5, 0x8000, v5
global_load_dword v11, v5, s[12:13]
""")
    a(f"""
s_cmp_ge_u32 s2, 12
s_cbranch_scc1 K3_NOMOD
s_lshl_b32 s24, s2, 9
v_add_u32 v12, s24, v0
v_lshlrev_b32 v12, 2, v12
global_load_dword v13, v12, s[12:13]
v_add_u32 v17, {4*2*3072}, v12
global_load_dword v14, v17, s[12:13]
v_add_u32 v17, {8*2*3072}, v12
global_load_dword v15, v17, s[12:13]
v_add_u32 v17, {12*2*3072}, v12
global_load_dword v16, v17, s[12:13]
s_waitcnt vmcnt(0)
v_add_f32 v13, v13, v14
v_add_f32 v15, v15, v16
v_add_f32 v13, v13, v15
v_cvt_pk_bf16_f32 v13, v13, v13
v_and_b32 v13, 0xffff0000, v13
v_add_u32 v12, {WS_MOD}, v12
global_store_dword v12, v13, s[12:13]
""")
    a.label("K3_NOMOD")
    a(f"""
s_lshl_b32 s18, s14, 23
s_lshl_b32 s19, s15, 19
s_add_u32 s18, s18, s19
v_readfirstlane_b32 s19, v1
s_nop 3
s_lshl_b32 s19, s19, 16
s_add_u32 s18, s18, s19
v_lshlrev_b32 v6, 8, v3
v_lshl_add_u32 v6, v4, 4, v6
v_lshlrev_b32 v7, 10, v4
v_lshl_add_u32 v7, v3, 4, v7
s_nop 1
""")
    KB, VB, SB = 64, 128, 192

    def issue_k(it):
        for t in range(4):
            a(f"s_add_u32 s20, s18, {it*16384 + t*4096}")
            for j in range(4):
                r = KB + 16 * t + 4 * j
                a(f"buffer_load_dwordx4 v[{r}:{r+3}], v6, s[4:7], s20 offen offset:{64*j}{NT}")

    def issue_v(it):
        for t in range(4):
            a(f"s_add_u32 s20, s18, {it*16384 + t*4096}")
            for r_ in range(4):
                r = VB + 16 * t + 4 * r_
                a(f"buffer_load_dwordx4 v[{r}:{r+3}], v7, s[8:11], s20 offen offset:{256*r_}{NT}")

    issue_k(0)
    issue_v(0)
    a("s_waitcnt vmcnt(32)")
    a("v_add_f32 v8, v8, v9")
    a("v_add_f32 v10, v10, v11")
    a("v_add_f32 v8, v8, v10")
    a("v_cvt_pk_bf16_f32 v8, v8, v8")
    a("v_lshlrev_b32 v5, 1, v0")
    a("ds_write_b16 v5, v8")
    a(f"""
v_lshrrev_b32 v9, 1, v3
v_and_b32 v10, 1, v9
v_lshrrev_b32 v9, 1, v9
v_cmp_eq_u32 vcc, 1, v10
v_mov_b32 v11, 0xffff
v_mov_b32 v12, 0xffff0000
s_nop 1
v_cndmask_b32 v10, v11, v12, vcc
""")
    for jj in range(4):
        a(f"v_cmp_eq_u32 vcc, {jj}, v9")
        a("s_nop 1")
        a(f"v_cndmask_b32 v{232+jj}, 0, v10, vcc")
    a("""
v_mov_b32 v236, 0xff800000
v_mov_b32 v237, 0xff800000
v_mov_b32 v238, 0
v_mov_b32 v239, 0
""")
    for i in range(8):
        a(f"v_mov_b32 v{224+i}, 0")
    a("s_waitcnt lgkmcnt(0)")
    a("s_barrier")
    a("""
v_and_b32 v9, 1, v3
v_lshlrev_b32 v9, 8, v9
v_lshl_add_u32 v9, v4, 4, v9
""")
    for ab in range(2):
        for j in range(4):
            r = 16 + 16 * ab + 4 * j
            a(f"ds_read_b128 v[{r}:{r+3}], v9 offset:{512*ab+64*j}")
    a("s_waitcnt lgkmcnt(0)")

    mreg = ["v236", "v237"]
    lreg = ["v238", "v239"]
    for it in range(NIT):
        last = it == NIT - 1
        a("s_waitcnt vmcnt(16)")
        for t in range(4):
            for ab in range(2):
                sreg = SB + 8 * t + 4 * ab
                for j in range(4):
                    kr = KB + 16 * t + 4 * j
                    qr = 16 + 16 * ab + 4 * j
                    c = "0" if j == 0 else f"v[{sreg}:{sreg+3}]"
                    a(f"v_mfma_f32_16x16x32_bf16 v[{sreg}:{sreg+3}], v[{kr}:{kr+3}], v[{qr}:{qr+3}], {c}")
        if not last:
            issue_k(it + 1)
        a("s_nop 7")
        a("s_nop 1")
        for ab in range(2):
            vals = [f"v{SB+8*t+4*ab+r}" for t in range(4) for r in range(4)]
            tm = f"v{240+ab}"
            a(f"v_max3_f32 {tm}, {vals[0]}, {vals[1]}, {vals[2]}")
            k = 3
            while k + 1 < 16:
                a(f"v_max3_f32 {tm}, {tm}, {vals[k]}, {vals[k+1]}")
                k += 2
            a(f"v_max3_f32 {tm}, {tm}, {vals[15]}, {mreg[ab]}")
            xlane_reduce(a, "v_max_f32", tm, "v242")
            a(f"v_sub_f32 v243, {mreg[ab]}, {tm}")
            a(f"v_mul_f32 v243, {f32hex(C)}, v243")
            a(f"v_exp_f32 v{244+ab}, v243")
            a(f"v_mov_b32 {mreg[ab]}, {tm}")
            a(f"v_mul_f32 v243, {f32hex(C)}, {tm}")
            a(f"s_mov_b32 s21, {f32hex(C)}")
            for v in vals:
                a(f"v_fma_f32 {v}, {v}, s21, -v243")
            for v in vals:
                a(f"v_exp_f32 {v}, {v}")
            a("s_nop 0")
            a(f"v_mul_f32 {lreg[ab]}, {lreg[ab]}, v{244+ab}")
            for v in vals:
                a(f"v_add_f32 {lreg[ab]}, {lreg[ab]}, {v}")
        a("s_nop 1")
        for ab in range(2):
            for r in range(4):
                o = f"v{224+4*ab+r}"
                qp = "[0,0,2,2]" if r % 2 == 0 else "[1,1,3,3]"
                a(f"v_mul_f32_dpp {o}, v{244+ab}, {o} quad_perm:{qp} row_mask:0xf bank_mask:0xf")
        a(f"s_waitcnt vmcnt({16 if not last else 0})")
        k = 0
        for t in range(4):
            for r in range(4):
                vr = VB + 16 * t + 4 * r
                for ab in range(2):
                    p = f"v{SB+8*t+4*ab+r}"
                    ar = 240 + 4 * (k % 3)
                    k += 1
                    a(f"v_cvt_pk_bf16_f32 v252, {p}, {p}")
                    for jj in range(4):
                        a(f"v_and_b32 v{ar+jj}, v252, v{232+jj}")
                    a("s_nop 1")
                    o = 224 + 4 * ab
                    a(f"v_mfma_f32_16x16x32_bf16 v[{o}:{o+3}], v[{ar}:{ar+3}], v[{vr}:{vr+3}], v[{o}:{o+3}]")
        if not last:
            issue_v(it + 1)
        a("s_nop 7")
        a("s_nop 1")
    for ab in range(2):
        xlane_reduce(a, "v_add_f32", lreg[ab], "v242")
    a("""
v_lshlrev_b32 v9, 11, v1
v_lshl_add_u32 v9, v3, 5, v9
v_lshl_add_u32 v9, v4, 3, v9
""")
    for ab in range(2):
        for r in range(4):
            off = 4096 + (2 * ab + (r & 1)) * 512 + (r >> 1) * 4
            a(f"ds_write_b32 v9, v{224+4*ab+r} offset:{off}")
    a("""
v_lshlrev_b32 v10, 5, v1
v_lshl_add_u32 v10, v2, 2, v10
v_cmp_gt_u32 vcc, 2, v2
s_and_saveexec_b64 s[22:23], vcc
""")
    for ab in range(2):
        a(f"ds_write_b32 v10, {mreg[ab]} offset:{1024+8*ab}")
        a(f"ds_write_b32 v10, {lreg[ab]} offset:{1024+16+8*ab}")
    a("""
s_mov_b64 exec, s[22:23]
s_waitcnt lgkmcnt(0)
s_barrier
""")
    a("""
v_lshrrev_b32 v9, 7, v0
v_lshlrev_b32 v10, 2, v9
v_lshlrev_b32 v11, 2, v0
""")
    for w in range(8):
        a(f"ds_read_b32 v{16+w}, v10 offset:{1024+32*w}")
        a(f"ds_read_b32 v{24+w}, v10 offset:{1024+32*w+16}")
        a(f"ds_read_b32 v{32+w}, v11 offset:{4096+2048*w}")
    a("s_waitcnt lgkmcnt(0)")
    a("v_max3_f32 v40, v16, v17, v18")
    a("v_max3_f32 v40, v40, v19, v20")
    a("v_max3_f32 v40, v40, v21, v22")
    a("v_max_f32 v40, v40, v23")
    a("v_mov_b32 v41, 0")
    a("v_mov_b32 v42, 0")
    for w in range(8):
        a(f"v_sub_f32 v43, v{16+w}, v40")
        a(f"v_mul_f32 v43, {f32hex(C)}, v43")
        a(f"v_exp_f32 v43, v43")
        a("s_nop 0")
        a(f"v_fmac_f32 v41, v{24+w}, v43")
        a(f"v_fmac_f32 v42, v{32+w}, v43")
    a(f"""
s_lshl_b32 s24, s2, 11
v_add_u32 v11, s24, v11
global_store_dword v11, v42, s[12:13] offset:0
""".replace("offset:0", ""))
    a.lines.pop()
    a(f"v_add_u32 v11, {WS_PO}, v11")
    a("global_store_dword v11, v42, s[12:13]")
    a(f"""
v_and_b32 v12, 127, v0
v_cmp_eq_u32 vcc, 0, v12
s_lshl_b32 s24, s2, 5
v_lshl_add_u32 v12, v9, 2, s24
v_add_u32 v12, {WS_PML}, v12
s_and_saveexec_b64 s[22:23], vcc
global_store_dword v12, v40, s[12:13]
global_store_dword v12, v41, s[12:13] offset:16
""")
    a.label("K3_END")
    a("s_endpgm")
    kernel_desc(a, name, 256)


def gen_k4(a):
    name = "k4_kernel"
    kernel_begin(a, name)
    C = SCALE * LOG2E
    a(f"""
s_cmp_ge_u32 s2, 256
s_cbranch_scc1 K4_END
s_load_dwordx2 s[6:7], s[0:1], 32
s_load_dwordx2 s[8:9], s[0:1], 104
s_and_b32 s10, s2, 31
s_lshr_b32 s11, s2, 5
v_lshrrev_b32 v1, 3, v0
v_and_b32 v2, 7, v0
s_lshl_b32 s12, s10, 7
v_lshl_add_u32 v3, v1, 2, s12
v_lshlrev_b32 v4, 10, v3
s_lshl_b32 s13, s11, 7
v_lshl_add_u32 v5, v2, 4, s13
v_add_u32 v4, v4, v5
s_waitcnt lgkmcnt(0)
global_load_dwordx4 v[8:11], v4, s[6:7]
global_load_dwordx4 v[12:15], v4, s[6:7] offset:1024
global_load_dwordx4 v[16:19], v4, s[6:7] offset:2048
global_load_dwordx4 v[20:23], v4, s[6:7] offset:3072
""")
    a(f"""
v_lshrrev_b32 v32, 7, v0
v_and_b32 v33, 127, v0
s_lshr_b32 s14, s10, 2
s_and_b32 s15, s10, 3
v_lshl_add_u32 v34, v32, 3, s14
v_lshlrev_b32 v35, 9, v34
s_lshl_b32 s16, s15, 2
v_add_u32 v35, s16, v35
v_add_u32 v35, {WS_PML}, v35
v_lshlrev_b32 v36, 15, v34
s_lshl_b32 s16, s15, 9
v_lshl_add_u32 v36, v33, 2, v36
v_add_u32 v36, s16, v36
v_add_u32 v36, {WS_PO}, v36
""")
    for s in range(16):
        a(f"global_load_dword v{64+s}, v35, s[8:9] offset:{32*s}")
        a(f"global_load_dword v{80+s}, v35, s[8:9] offset:{32*s+16}")
    for s in range(16):
        a(f"global_load_dword v{96+s}, v36, s[8:9]")
        a(f"v_add_u32 v36, 0x800, v36")
    a("s_waitcnt vmcnt(0)")
    a("v_max3_f32 v40, v64, v65, v66")
    for s in range(3, 15, 2):
        a(f"v_max3_f32 v40, v40, v{64+s}, v{65+s}")
    a("v_max_f32 v40, v40, v79")
    a("v_mov_b32 v41, 0")
    a("v_mov_b32 v42, 0")
    for s in range(16):
        a(f"v_sub_f32 v43, v{64+s}, v40")
        a(f"v_mul_f32 v43, {f32hex(C)}, v43")
        a(f"v_exp_f32 v43, v43")
        a("s_nop 0")
        a(f"v_fmac_f32 v41, v{80+s}, v43")
        a(f"v_fmac_f32 v42, v{96+s}, v43")
    a("v_rcp_f32 v41, v41")
    a("s_nop 0")
    a("v_mul_f32 v42, v42, v41")
    bf16_round(a, "v42", "v42")
    a("""
v_lshlrev_b32 v45, 2, v0
ds_write_b32 v45, v42 offset:16384
s_waitcnt lgkmcnt(0)
s_barrier
v_lshlrev_b32 v45, 4, v1
ds_read_b128 v[24:27], v45 offset:16384
ds_read_b128 v[28:31], v45 offset:16896
s_waitcnt lgkmcnt(0)
""")
    gemv_fma(a, 8, 4, [f"v{24+r}" for r in range(4)], [f"v{28+r}" for r in range(4)], 44, "v41", "v42")
    gemv_reduce_lds(a, 44, 0)
    a(f"""
v_cmp_gt_u32 vcc, 128, v0
v_lshrrev_b32 v1, 4, v0
v_bfe_u32 v2, v0, 3, 1
v_and_b32 v3, 7, v0
s_lshl_b32 s15, s11, 6
v_lshl_add_u32 v4, v1, 3, v3
v_lshlrev_b32 v5, 9, v2
v_add3_u32 v4, v4, v5, s15
v_lshlrev_b32 v4, 2, v4
v_add_u32 v4, {WS_ACC1}, v4
s_and_saveexec_b64 s[16:17], vcc
s_cbranch_execz K4_END
global_atomic_add_f32 v4, v40, s[8:9]
""")
    a.label("K4_END")
    a("s_endpgm")
    kernel_desc(a, name, 128)


def gen_k5(a):
    name = "k5_kernel"
    kernel_begin(a, name)
    a(f"""
s_cmp_ge_u32 s2, 224
s_cbranch_scc1 K5_END
s_load_dwordx2 s[4:5], s[0:1], 0
s_load_dwordx2 s[6:7], s[0:1], 48
s_load_dwordx2 s[18:19], s[0:1], 56
s_load_dwordx2 s[8:9], s[0:1], 104
s_and_b32 s10, s2, 7
s_lshr_b32 s11, s2, 3
v_lshrrev_b32 v1, 3, v0
v_and_b32 v2, 7, v0
s_lshl_b32 s12, s10, 6
v_lshl_add_u32 v3, v1, 1, s12
v_mul_u32_u24 v4, 0xe00, v3
s_lshl_b32 s13, s11, 7
v_lshl_add_u32 v5, v2, 4, s13
v_add_u32 v4, v4, v5
s_waitcnt lgkmcnt(0)
global_load_dwordx4 v[8:11], v4, s[6:7]
global_load_dwordx4 v[12:15], v4, s[6:7] offset:3584
global_load_dwordx4 v[16:19], v4, s[18:19]
global_load_dwordx4 v[20:23], v4, s[18:19] offset:3584
""")
    a(f"""
v_and_b32 v6, 63, v0
v_lshlrev_b32 v7, 4, v6
global_load_dwordx4 v[24:27], v7, s[4:5]
global_load_dwordx4 v[28:31], v7, s[4:5] offset:1024
v_lshlrev_b32 v7, 5, v6
v_add_u32 v7, {WS_ACC1}, v7
global_load_dwordx4 v[64:67], v7, s[8:9]
global_load_dwordx4 v[68:71], v7, s[8:9] offset:16
global_load_dwordx4 v[72:75], v7, s[8:9] offset:2048
global_load_dwordx4 v[76:79], v7, s[8:9] offset:2064
""")
    a("v_lshlrev_b32 v7, 5, v6")
    for which, dst in ((1024, 80), (1536, 96), (2048, 112)):
        for b in range(2):
            off = WS_MOD + (b * 3072 + which) * 4
            a(f"v_add_u32 v48, {off}, v7")
            a(f"global_load_dwordx4 v[{dst+8*b}:{dst+8*b+3}], v48, s[8:9]")
            a(f"global_load_dwordx4 v[{dst+8*b+4}:{dst+8*b+7}], v48, s[8:9] offset:16")
    a("s_waitcnt vmcnt(0)")
    for b in range(2):
        for d in range(4):
            a(f"v_lshlrev_b32 v{128+8*b+2*d}, 16, v{24+4*b+d}")
            a(f"v_and_b32 v{128+8*b+2*d+1}, 0xffff0000, v{24+4*b+d}")
    for i in range(16):
        bf16_round(a, f"v{64+i}", f"v{64+i}")
        a(f"v_mul_f32 v{64+i}, v{80+i}, v{64+i}")
        bf16_round(a, f"v{64+i}", f"v{64+i}")
        a(f"v_add_f32 v{128+i}, v{128+i}, v{64+i}")
        bf16_round(a, f"v{128+i}", f"v{128+i}")
    a(f"""
v_lshlrev_b32 v7, 5, v6
v_add_u32 v7, {WS_X1}, v7
v_cmp_gt_u32 vcc, 64, v0
s_cmp_eq_u32 s2, 0
s_cselect_b64 s[16:17], vcc, 0
s_and_saveexec_b64 s[16:17], s[16:17]
s_cbranch_execz K5_NOX1
global_store_dwordx4 v7, v[128:131], s[8:9]
global_store_dwordx4 v7, v[132:135], s[8:9] offset:16
global_store_dwordx4 v7, v[136:139], s[8:9] offset:2048
global_store_dwordx4 v7, v[140:143], s[8:9] offset:2064
""")
    a.label("K5_NOX1")
    a("s_mov_b64 exec, s[16:17]")
    ln_stats(a, [f"v{128+i}" for i in range(8)], "v64", "v65", "v66", "v67")
    ln_stats(a, [f"v{136+i}" for i in range(8)], "v64", "v65", "v68", "v69")
    a("v_rcp_f32 v67, v67")
    a("v_rcp_f32 v69, v69")
    a("s_nop 0")
    for b in range(2):
        for e in range(8):
            x = f"v{128+8*b+e}"
            a(f"v_sub_f32 {x}, {x}, v{66+2*b}")
            bf16_round(a, x, x)
            a(f"v_mul_f32 {x}, {x}, v{67+2*b}")
            bf16_round(a, x, x)
            cbv = f"v{112+8*b+e}"
            a(f"v_add_f32 {cbv}, 1.0, {cbv}")
            bf16_round(a, cbv, cbv)
            a(f"v_mul_f32 {x}, {x}, {cbv}")
            bf16_round(a, x, x)
            a(f"v_add_f32 {x}, {x}, v{96+8*b+e}")
            bf16_round(a, x, x)
    a("""
v_lshlrev_b32 v7, 5, v6
ds_write_b128 v7, v[128:131] offset:16384
ds_write_b128 v7, v[132:135] offset:16400
ds_write_b128 v7, v[136:139] offset:18432
ds_write_b128 v7, v[140:143] offset:18448
s_waitcnt lgkmcnt(0)
s_barrier
v_lshlrev_b32 v7, 2, v3
ds_read_b64 v[24:25], v7 offset:16384
ds_read_b64 v[26:27], v7 offset:18432
s_waitcnt lgkmcnt(0)
""")
    gemv_fma(a, 8, 2, ["v24", "v25"], ["v26", "v27"], 44, "v41", "v42")
    gemv_fma(a, 16, 2, ["v24", "v25"], ["v26", "v27"], 144, "v41", "v42")
    gemv_reduce_lds(a, 44, 0)
    a("v_mov_b32 v160, v40")
    a("s_barrier")
    gemv_reduce_lds(a, 144, 0)
    a(f"""
v_cmp_gt_u32 vcc, 128, v0
v_lshrrev_b32 v1, 4, v0
v_bfe_u32 v2, v0, 3, 1
v_and_b32 v3, 7, v0
s_lshl_b32 s15, s11, 6
v_lshl_add_u32 v4, v1, 3, v3
v_mul_u32_u24 v5, 1792, v2
v_add3_u32 v4, v4, v5, s15
v_lshlrev_b32 v4, 2, v4
v_add_u32 v4, {WS_GU}, v4
v_add_u32 v5, {1792*2*4}, v4
s_and_saveexec_b64 s[16:17], vcc
s_cbranch_execz K5_END
global_atomic_add_f32 v4, v160, s[8:9]
global_atomic_add_f32 v5, v40, s[8:9]
""")
    a.label("K5_END")
    a("s_endpgm")
    kernel_desc(a, name, 168)


def gen_k6(a):
    name = "k6_kernel"
    kernel_begin(a, name)
    a(f"""
s_cmp_ge_u32 s2, 224
s_cbranch_scc1 K6_END
s_load_dwordx2 s[6:7], s[0:1], 64
s_load_dwordx2 s[8:9], s[0:1], 104
s_lshr_b32 s11, s2, 5
s_mul_i32 s13, s11, 32
s_sub_u32 s10, s2, s13
s_cmp_ge_u32 s10, 28
""")
    a.lines.pop()
    a.lines.pop(); a.lines.pop(); a.lines.pop()
    a(f"""
s_and_b32 s11, s2, 7
s_lshr_b32 s10, s2, 3
v_lshrrev_b32 v1, 3, v0
v_and_b32 v2, 7, v0
s_lshl_b32 s12, s10, 6
v_lshl_add_u32 v3, v1, 1, s12
v_lshlrev_b32 v4, 10, v3
s_lshl_b32 s13, s11, 7
v_lshl_add_u32 v5, v2, 4, s13
v_add_u32 v4, v4, v5
v_lshlrev_b32 v6, 2, v3
v_add_u32 v6, {WS_GU}, v6
v_add_u32 v7, {1792*2*4}, v6
s_waitcnt lgkmcnt(0)
global_load_dwordx4 v[8:11], v4, s[6:7]
global_load_dwordx4 v[12:15], v4, s[6:7] offset:1024
global_load_dwordx2 v[24:25], v6, s[8:9]
global_load_dwordx2 v[28:29], v7, s[8:9]
v_add_u32 v6, {1792*4}, v6
v_add_u32 v7, {1792*4}, v7
global_load_dwordx2 v[26:27], v6, s[8:9]
global_load_dwordx2 v[30:31], v7, s[8:9]
s_waitcnt vmcnt(0)
""")
    for i in range(4):
        bf16_round(a, f"v{24+i}", f"v{24+i}")
        bf16_round(a, f"v{28+i}", f"v{28+i}")
        a(f"v_mul_f32 v{24+i}, v{24+i}, v{28+i}")
        bf16_round(a, f"v{24+i}", f"v{24+i}")
    gemv_fma(a, 8, 2, ["v24", "v25"], ["v26", "v27"], 44, "v41", "v42")
    gemv_reduce_lds(a, 44, 0)
    a(f"""
v_cmp_gt_u32 vcc, 128, v0
v_lshrrev_b32 v1, 4, v0
v_bfe_u32 v2, v0, 3, 1
v_and_b32 v3, 7, v0
s_lshl_b32 s15, s11, 6
v_lshl_add_u32 v4, v1, 3, v3
v_lshlrev_b32 v5, 9, v2
v_add3_u32 v4, v4, v5, s15
v_lshlrev_b32 v4, 2, v4
v_add_u32 v4, {WS_ACC2}, v4
s_and_saveexec_b64 s[16:17], vcc
s_cbranch_execz K6_END
global_atomic_add_f32 v4, v40, s[8:9]
""")
    a.label("K6_END")
    a("s_endpgm")
    kernel_desc(a, name, 96)


def gen_k7(a):
    name = "k7_kernel"
    kernel_begin(a, name)
    a(f"""
s_cmp_ge_u32 s2, 4
s_cbranch_scc1 K7_END
s_load_dwordx2 s[6:7], s[0:1], 88
s_load_dwordx2 s[8:9], s[0:1], 104
s_lshl_b32 s10, s2, 8
v_add_u32 v1, s10, v0
v_lshlrev_b32 v2, 2, v1
v_lshrrev_b32 v3, 9, v1
v_and_b32 v4, 511, v1
v_mul_u32_u24 v3, 3072, v3
v_add3_u32 v3, v3, v4, 0
v_add_u32 v3, 2560, v3
v_lshlrev_b32 v3, 2, v3
s_waitcnt lgkmcnt(0)
v_add_u32 v5, {WS_ACC2}, v2
global_load_dword v8, v5, s[8:9]
v_add_u32 v5, {WS_X1}, v2
global_load_dword v9, v5, s[8:9]
""")
    a(f"v_add_u32 v5, {WS_MOD}, v3")
    a(f"global_load_dword v10, v5, s[8:9]")
    a("s_waitcnt vmcnt(0)")
    bf16_round(a, "v8", "v8")
    a("v_mul_f32 v8, v8, v10")
    bf16_round(a, "v8", "v8")
    a("v_add_f32 v8, v8, v9")
    a("v_cvt_pk_bf16_f32 v8, v8, v8")
    a("v_lshlrev_b32 v1, 1, v1")
    a("global_store_short v1, v8, s[6:7]")
    a.label("K7_END")
    a("s_endpgm")
    kernel_desc(a, name, 32)


def main():
    global NT
    if len(sys.argv) > 2 and sys.argv[2] == 'nt':
        NT = ' nt'
    a = Asm()
    hdr = open(f"cdna_kernels/{NAME}.s.ref").read().split("\n")
    for ln in hdr:
        if ln.startswith("; @launch"):
            continue
        if not ln.startswith(";"):
            break
        a.raw(ln)
    a.raw("; @launch kernel=k1_kernel grid=(192,1,1) block=(256,1,1) lds=20480")
    a.raw("; @launch kernel=k2_kernel grid=(256,1,1) block=(256,1,1) lds=20480")
    a.raw("; @launch kernel=k3_kernel grid=(256,1,1) block=(512,1,1) lds=20480")
    a.raw("; @launch kernel=k4_kernel grid=(256,1,1) block=(256,1,1) lds=20480")
    a.raw("; @launch kernel=k5_kernel grid=(224,1,1) block=(256,1,1) lds=24576")
    a.raw("; @launch kernel=k6_kernel grid=(224,1,1) block=(256,1,1) lds=20480")
    a.raw("; @launch kernel=k7_kernel grid=(4,1,1) block=(256,1,1) lds=0")
    a.raw('.amdgcn_target "amdgcn-amd-amdhsa--gfx950"')
    gen_k1(a)
    gen_k2(a)
    gen_k3(a)
    gen_k4(a)
    gen_k5(a)
    gen_k6(a)
    gen_k7(a)
    out = sys.argv[1] if len(sys.argv) > 1 else f"cdna_kernels/{NAME}.s"
    open(out, "w").write(a.text())


if __name__ == "__main__":
    main()
```

```python
import sys

NAME = "adaLN_cond__gqa_block_cached__glu_gated_bilinear__decode"

WS_MODP = 0x0000
WS_QP   = 0x20000
WS_PO   = 0x40000
WS_PML  = 0xC0000
WS_ZERO = 0xC4000
WS_ACC1 = 0xC4000
WS_GU   = 0xC8000
WS_ACC2 = 0xD0000
WS_X1   = 0xD4000
WS_MOD  = 0xD8000
NT = ' nt'

LOG2E = 1.4426950408889634
SCALE = 128 ** -0.5


def f32hex(x):
    import struct
    return "0x%08x" % struct.unpack("<I", struct.pack("<f", x))[0]


class Asm:
    def __init__(self):
        self.lines = []

    def __call__(self, s):
        for ln in s.strip("\n").split("\n"):
            self.lines.append("    " + ln.strip())

    def label(self, s):
        self.lines.append(s + ":")

    def raw(self, s):
        self.lines.append(s)

    def text(self):
        return "\n".join(self.lines) + "\n"


def kernel_begin(a, name):
    a.raw(".text")
    a.raw(f".globl {name}")
    a.raw(".p2align 8")
    a.raw(f".type {name},@function")
    a.label(name)


def kernel_desc(a, name, vgpr, sgpr=102):
    acc = (vgpr + 3) // 4 * 4
    a.raw('.section .rodata,"a"')
    a.raw(".p2align 6")
    a.raw(f".amdhsa_kernel {name}")
    a.raw(f"  .amdhsa_next_free_vgpr {vgpr}")
    a.raw(f"  .amdhsa_next_free_sgpr {sgpr}")
    a.raw(f"  .amdhsa_accum_offset {acc}")
    a.raw("  .amdhsa_group_segment_fixed_size 0")
    a.raw("  .amdhsa_kernarg_size 112")
    a.raw("  .amdhsa_user_sgpr_count 2")
    a.raw("  .amdhsa_user_sgpr_kernarg_segment_ptr 1")
    a.raw("  .amdhsa_system_sgpr_workgroup_id_x 1")
    a.raw(".end_amdhsa_kernel")


def bf16_round(a, d, s, tmp=None):
    t = tmp if tmp else d
    a(f"v_cvt_pk_bf16_f32 {t}, {s}, {s}")
    a(f"v_and_b32 {d}, 0xffff0000, {t}")


def wave_sum(a, v, t):
    a(f"s_nop 1")
    a(f"v_add_f32_dpp {v}, {v}, {v} quad_perm:[1,0,3,2] row_mask:0xf bank_mask:0xf")
    a(f"s_nop 1")
    a(f"v_add_f32_dpp {v}, {v}, {v} quad_perm:[2,3,0,1] row_mask:0xf bank_mask:0xf")
    a(f"s_nop 1")
    a(f"v_add_f32_dpp {v}, {v}, {v} row_half_mirror row_mask:0xf bank_mask:0xf")
    a(f"s_nop 1")
    a(f"v_add_f32_dpp {v}, {v}, {v} row_mirror row_mask:0xf bank_mask:0xf")
    a(f"v_mov_b32 {t}, {v}")
    a(f"s_nop 1")
    a(f"v_permlane16_swap_b32 {t}, {v}")
    a(f"s_nop 1")
    a(f"v_add_f32 {v}, {v}, {t}")
    a(f"v_mov_b32 {t}, {v}")
    a(f"s_nop 1")
    a(f"v_permlane32_swap_b32 {t}, {v}")
    a(f"s_nop 1")
    a(f"v_add_f32 {v}, {v}, {t}")


def gemv_fma(a, wbase, nrows, act0, act1, acc, tlo, thi):
    for i in range(16):
        a(f"v_mov_b32 v{acc+i}, 0")
    for r in range(nrows):
        for d in range(4):
            w = f"v{wbase+4*r+d}"
            a(f"v_lshlrev_b32 {tlo}, 16, {w}")
            a(f"v_and_b32 {thi}, 0xffff0000, {w}")
            a(f"v_fmac_f32 v{acc+2*d}, {act0[r]}, {tlo}")
            a(f"v_fmac_f32 v{acc+2*d+1}, {act0[r]}, {thi}")
            a(f"v_fmac_f32 v{acc+8+2*d}, {act1[r]}, {tlo}")
            a(f"v_fmac_f32 v{acc+8+2*d+1}, {act1[r]}, {thi}")


def gemv_reduce_lds(a, acc, lds_base):
    a(f"v_lshlrev_b32 v60, 6, v0")
    a(f"v_add_u32 v60, {lds_base}, v60")
    for i in range(4):
        a(f"ds_write_b128 v60, v[{acc+4*i}:{acc+4*i+3}] offset:{16*i}")
    a("s_waitcnt lgkmcnt(0)")
    a("s_barrier")
    a(f"v_lshlrev_b32 v60, 2, v0")
    a(f"v_add_u32 v60, {lds_base}, v60")
    for rg in range(32):
        a(f"ds_read_b32 v{64+rg}, v60 offset:{512*rg}")
    a("s_waitcnt lgkmcnt(0)")
    a("v_add_f32 v40, v64, v65")
    for rg in range(2, 32):
        a(f"v_add_f32 v40, v40, v{64+rg}")


def gen_k1(a):
    name = "k1_kernel"
    kernel_begin(a, name)
    a("""
s_cmp_ge_u32 s2, 192
s_cbranch_scc1 K1_END
s_load_dwordx2 s[4:5], s[0:1], 72
s_load_dwordx2 s[6:7], s[0:1], 80
s_load_dwordx2 s[8:9], s[0:1], 104
s_and_b32 s10, s2, 3
s_lshr_b32 s11, s2, 2
v_lshrrev_b32 v1, 3, v0
v_and_b32 v2, 7, v0
s_lshl_b32 s12, s10, 7
v_lshl_add_u32 v3, v1, 2, s12
v_mul_u32_u24 v4, 0x1800, v3
s_lshl_b32 s13, s11, 7
v_lshl_add_u32 v5, v2, 4, s13
v_add_u32 v4, v4, v5
v_lshlrev_b32 v6, 1, v3
s_waitcnt lgkmcnt(0)
global_load_dwordx4 v[8:11], v4, s[6:7]
v_add_u32 v4, 0x1800, v4
global_load_dwordx4 v[12:15], v4, s[6:7]
v_add_u32 v4, 0x1800, v4
global_load_dwordx4 v[16:19], v4, s[6:7]
v_add_u32 v4, 0x1800, v4
global_load_dwordx4 v[20:23], v4, s[6:7]
""")
    for b in range(2):
        for r in range(4):
            a(f"global_load_ushort v{24+4*b+r}, v6, s[4:5] offset:{1024*b+2*r}")
    a(f"""
s_lshl_b32 s14, s2, 8
v_add_u32 v7, s14, v0
v_cmp_gt_u32 vcc, 0x4000, v7
v_lshlrev_b32 v7, 2, v7
v_add_u32 v7, {WS_ZERO}, v7
v_mov_b32 v41, 0
s_and_saveexec_b64 s[16:17], vcc
s_cbranch_execz K1_NOZERO
global_store_dword v7, v41, s[8:9]
""")
    a.label("K1_NOZERO")
    a("s_mov_b64 exec, s[16:17]")
    a("s_waitcnt vmcnt(0)")
    for i in range(8):
        v = f"v{24+i}"
        a(f"v_lshlrev_b32 {v}, 16, {v}")
        a(f"v_mul_f32 v41, {f32hex(-LOG2E)}, {v}")
        a(f"v_exp_f32 v41, v41")
        a(f"s_nop 0")
        a(f"v_add_f32 v41, 1.0, v41")
        a(f"v_rcp_f32 v41, v41")
        a(f"s_nop 0")
        a(f"v_mul_f32 {v}, {v}, v41")
        bf16_round(a, v, v)
    gemv_fma(a, 8, 4, [f"v{24+r}" for r in range(4)], [f"v{28+r}" for r in range(4)], 44, "v41", "v42")
    gemv_reduce_lds(a, 44, 0)
    a(f"""
v_cmp_gt_u32 vcc, 128, v0
v_lshrrev_b32 v1, 4, v0
v_bfe_u32 v2, v0, 3, 1
v_and_b32 v3, 7, v0
s_mul_i32 s14, s10, {2*3072}
s_lshl_b32 s15, s11, 6
s_add_u32 s14, s14, s15
v_lshl_add_u32 v4, v1, 3, v3
v_mul_u32_u24 v5, 3072, v2
v_add3_u32 v4, v4, v5, s14
v_lshlrev_b32 v4, 2, v4
s_and_saveexec_b64 s[16:17], vcc
s_cbranch_execz K1_END
global_store_dword v4, v40, s[8:9] offset:{WS_MODP}
""")
    a.label("K1_END")
    a("s_endpgm")
    kernel_desc(a, name, 96)


def ln_stats(a, xlo_regs, vsum, vt, out_mean, out_rden):
    a(f"v_add_f32 {vsum}, {xlo_regs[0]}, {xlo_regs[1]}")
    for r in xlo_regs[2:]:
        a(f"v_add_f32 {vsum}, {vsum}, {r}")
    wave_sum(a, vsum, vt)
    a(f"v_mul_f32 {vsum}, {f32hex(1.0/512)}, {vsum}")
    a(f"v_sub_f32 {vt}, {xlo_regs[0]}, {vsum}")
    a(f"v_mul_f32 {out_rden}, {vt}, {vt}")
    for r in xlo_regs[1:]:
        a(f"v_sub_f32 {vt}, {r}, {vsum}")
        a(f"v_fmac_f32 {out_rden}, {vt}, {vt}")
    wave_sum(a, out_rden, vt)
    a(f"v_mul_f32 {out_rden}, {f32hex(1.0/512)}, {out_rden}")
    bf16_round(a, out_rden, out_rden)
    a(f"v_add_f32 {out_rden}, {f32hex(1e-5)}, {out_rden}")
    bf16_round(a, out_rden, out_rden)
    a(f"v_sqrt_f32 {out_rden}, {out_rden}")
    a("s_nop 0")
    bf16_round(a, out_rden, out_rden)
    bf16_round(a, out_mean, vsum)


def gen_k2(a):
    name = "k2_kernel"
    kernel_begin(a, name)
    a("""
s_cmp_ge_u32 s2, 256
s_cbranch_scc1 K2_END
s_load_dwordx2 s[4:5], s[0:1], 0
s_load_dwordx2 s[6:7], s[0:1], 24
s_load_dwordx2 s[8:9], s[0:1], 104
s_and_b32 s10, s2, 3
s_lshr_b32 s11, s2, 2
v_lshrrev_b32 v1, 3, v0
v_and_b32 v2, 7, v0
s_lshl_b32 s12, s10, 7
v_lshl_add_u32 v3, v1, 2, s12
v_lshlrev_b32 v4, 13, v3
s_lshl_b32 s13, s11, 7
v_lshl_add_u32 v5, v2, 4, s13
v_add_u32 v4, v4, v5
v_and_b32 v6, 63, v0
v_lshlrev_b32 v6, 4, v6
s_waitcnt lgkmcnt(0)
global_load_dwordx4 v[8:11], v4, s[6:7]
v_add_u32 v4, 0x2000, v4
global_load_dwordx4 v[12:15], v4, s[6:7]
v_add_u32 v4, 0x2000, v4
global_load_dwordx4 v[16:19], v4, s[6:7]
v_add_u32 v4, 0x2000, v4
global_load_dwordx4 v[20:23], v4, s[6:7]
global_load_dwordx4 v[24:27], v6, s[4:5]
global_load_dwordx4 v[28:31], v6, s[4:5] offset:1024
""")
    a(f"""
v_lshrrev_b32 v32, 7, v0
v_and_b32 v33, 127, v0
v_add_u32 v33, s12, v33
v_mul_u32_u24 v34, 3072, v32
v_add_u32 v34, v34, v33
v_lshlrev_b32 v34, 2, v34
""")
    for ks in range(4):
        base = WS_MODP + ks * 2 * 3072 * 4
        a(f"v_add_u32 v35, {base}, v34")
        a(f"global_load_dword v{36+ks}, v35, s[8:9]")
        a(f"global_load_dword v{40+ks}, v35, s[8:9] offset:2048")
    a("""
v_lshlrev_b32 v35, 1, v33
v_lshl_add_u32 v35, v32, 10, v35
global_load_ushort v44, v35, s[4:5]
s_waitcnt vmcnt(9)
""")
    for b in range(2):
        for d in range(4):
            a(f"v_lshlrev_b32 v{48+8*b+2*d}, 16, v{24+4*b+d}")
            a(f"v_and_b32 v{48+8*b+2*d+1}, 0xffff0000, v{24+4*b+d}")
    ln_stats(a, [f"v{48+i}" for i in range(8)], "v64", "v65", "v66", "v67")
    ln_stats(a, [f"v{56+i}" for i in range(8)], "v64", "v65", "v68", "v69")
    a(f"""
s_waitcnt vmcnt(0)
v_add_f32 v36, v36, v37
v_add_f32 v38, v38, v39
v_add_f32 v36, v36, v38
v_add_f32 v40, v40, v41
v_add_f32 v42, v42, v43
v_add_f32 v40, v40, v42
""")
    bf16_round(a, "v36", "v36")
    bf16_round(a, "v40", "v40")
    a("""
v_cmp_eq_u32 vcc, 0, v32
s_nop 1
v_cndmask_b32 v66, v68, v66, vcc
v_cndmask_b32 v67, v69, v67, vcc
v_lshlrev_b32 v44, 16, v44
v_sub_f32 v44, v44, v66
""")
    bf16_round(a, "v44", "v44")
    a("v_rcp_f32 v67, v67")
    a("s_nop 0")
    a("v_mul_f32 v44, v44, v67")
    bf16_round(a, "v44", "v44")
    a("v_add_f32 v40, 1.0, v40")
    bf16_round(a, "v40", "v40")
    a("v_mul_f32 v44, v44, v40")
    bf16_round(a, "v44", "v44")
    a("v_add_f32 v44, v44, v36")
    bf16_round(a, "v44", "v44")
    a("""
v_lshlrev_b32 v45, 2, v0
ds_write_b32 v45, v44 offset:16384
s_waitcnt lgkmcnt(0)
s_barrier
v_lshlrev_b32 v45, 4, v1
ds_read_b128 v[24:27], v45 offset:16384
ds_read_b128 v[28:31], v45 offset:16896
s_waitcnt lgkmcnt(0)
""")
    gemv_fma(a, 8, 4, [f"v{24+r}" for r in range(4)], [f"v{28+r}" for r in range(4)], 44, "v41", "v42")
    gemv_reduce_lds(a, 44, 0)
    a(f"""
v_cmp_gt_u32 vcc, 128, v0
v_lshrrev_b32 v1, 4, v0
v_bfe_u32 v2, v0, 3, 1
v_and_b32 v3, 7, v0
s_lshl_b32 s14, s10, 13
s_lshl_b32 s15, s11, 6
s_add_u32 s14, s14, s15
v_lshl_add_u32 v4, v1, 3, v3
v_lshlrev_b32 v5, 12, v2
v_add3_u32 v4, v4, v5, s14
v_lshlrev_b32 v4, 2, v4
v_add_u32 v4, {WS_QP}, v4
s_and_saveexec_b64 s[16:17], vcc
s_cbranch_execz K2_END
global_store_dword v4, v40, s[8:9]
""")
    a.label("K2_END")
    a("s_endpgm")
    kernel_desc(a, name, 96)


def xlane_reduce(a, op, v, t):
    a(f"v_mov_b32 {t}, {v}")
    a("s_nop 1")
    a(f"v_permlane16_swap_b32 {t}, {v}")
    a("s_nop 1")
    a(f"{op} {v}, {v}, {t}")
    a(f"v_mov_b32 {t}, {v}")
    a("s_nop 1")
    a(f"v_permlane32_swap_b32 {t}, {v}")
    a("s_nop 1")
    a(f"{op} {v}, {v}, {t}")


def gen_k3(a):
    name = "k3_kernel"
    NIT = 4
    kernel_begin(a, name)
    C = SCALE * LOG2E
    a(f"""
s_cmp_ge_u32 s2, 256
s_cbranch_scc1 K3_END
s_load_dwordx2 s[4:5], s[0:1], 8
s_load_dwordx2 s[8:9], s[0:1], 16
s_load_dwordx2 s[12:13], s[0:1], 104
s_lshr_b32 s14, s2, 4
s_and_b32 s15, s2, 15
v_lshrrev_b32 v1, 6, v0
v_and_b32 v2, 63, v0
v_and_b32 v3, 15, v2
v_lshrrev_b32 v4, 4, v2
s_waitcnt lgkmcnt(0)
s_mov_b32 s6, 0x8000000
s_mov_b32 s7, 0x00020000
s_mov_b32 s10, 0x8000000
s_mov_b32 s11, 0x00020000
""")
    a(f"""
s_lshr_b32 s16, s14, 3
s_and_b32 s17, s14, 7
s_lshl_b32 s16, s16, 12
s_lshl_b32 s17, s17, 9
s_add_u32 s16, s16, s17
v_add_u32 v5, s16, v0
v_lshlrev_b32 v5, 2, v5
v_add_u32 v5, {WS_QP}, v5
global_load_dword v8, v5, s[12:13]
v_add_u32 v5, 0x8000, v5
global_load_dword v9, v5, s[12:13]
v_add_u32 v5, 0x8000, v5
global_load_dword v10, v5, s[12:13]
v_add_u32 v5, 0x8000, v5
global_load_dword v11, v5, s[12:13]
""")
    a(f"""
s_cmp_ge_u32 s2, 12
s_cbranch_scc1 K3_NOMOD
s_lshl_b32 s24, s2, 9
v_add_u32 v12, s24, v0
v_lshlrev_b32 v12, 2, v12
global_load_dword v13, v12, s[12:13]
v_add_u32 v17, {4*2*3072}, v12
global_load_dword v14, v17, s[12:13]
v_add_u32 v17, {8*2*3072}, v12
global_load_dword v15, v17, s[12:13]
v_add_u32 v17, {12*2*3072}, v12
global_load_dword v16, v17, s[12:13]
s_waitcnt vmcnt(0)
v_add_f32 v13, v13, v14
v_add_f32 v15, v15, v16
v_add_f32 v13, v13, v15
v_cvt_pk_bf16_f32 v13, v13, v13
v_and_b32 v13, 0xffff0000, v13
v_add_u32 v12, {WS_MOD}, v12
global_store_dword v12, v13, s[12:13]
""")
    a.label("K3_NOMOD")
    a(f"""
s_lshl_b32 s18, s14, 23
s_lshl_b32 s19, s15, 19
s_add_u32 s18, s18, s19
v_readfirstlane_b32 s19, v1
s_nop 3
s_lshl_b32 s19, s19, 16
s_add_u32 s18, s18, s19
v_lshlrev_b32 v6, 8, v3
v_lshl_add_u32 v6, v4, 4, v6
v_lshlrev_b32 v7, 10, v4
v_lshl_add_u32 v7, v3, 4, v7
s_nop 1
""")
    KB, VB, SB = 64, 128, 192

    def issue_k(it):
        for t in range(4):
            a(f"s_add_u32 s20, s18, {it*16384 + t*4096}")
            for j in range(4):
                r = KB + 16 * t + 4 * j
                a(f"buffer_load_dwordx4 v[{r}:{r+3}], v6, s[4:7], s20 offen offset:{64*j}{NT}")

    def issue_v(it):
        for t in range(4):
            a(f"s_add_u32 s20, s18, {it*16384 + t*4096}")
            for r_ in range(4):
                r = VB + 16 * t + 4 * r_
                a(f"buffer_load_dwordx4 v[{r}:{r+3}], v7, s[8:11], s20 offen offset:{256*r_}{NT}")

    issue_k(0)
    issue_v(0)
    a("s_waitcnt vmcnt(32)")
    a("v_add_f32 v8, v8, v9")
    a("v_add_f32 v10, v10, v11")
    a("v_add_f32 v8, v8, v10")
    a("v_cvt_pk_bf16_f32 v8, v8, v8")
    a("v_lshlrev_b32 v5, 1, v0")
    a("ds_write_b16 v5, v8")
    a(f"""
v_lshrrev_b32 v9, 1, v3
v_and_b32 v10, 1, v9
v_lshrrev_b32 v9, 1, v9
v_cmp_eq_u32 vcc, 1, v10
v_mov_b32 v11, 0xffff
v_mov_b32 v12, 0xffff0000
s_nop 1
v_cndmask_b32 v10, v11, v12, vcc
""")
    for jj in range(4):
        a(f"v_cmp_eq_u32 vcc, {jj}, v9")
        a("s_nop 1")
        a(f"v_cndmask_b32 v{232+jj}, 0, v10, vcc")
    a("""
v_mov_b32 v236, 0xff800000
v_mov_b32 v237, 0xff800000
v_mov_b32 v238, 0
v_mov_b32 v239, 0
""")
    for i in range(8):
        a(f"v_mov_b32 v{224+i}, 0")
    a("s_waitcnt lgkmcnt(0)")
    a("s_barrier")
    a("""
v_and_b32 v9, 1, v3
v_lshlrev_b32 v9, 8, v9
v_lshl_add_u32 v9, v4, 4, v9
""")
    for ab in range(2):
        for j in range(4):
            r = 16 + 16 * ab + 4 * j
            a(f"ds_read_b128 v[{r}:{r+3}], v9 offset:{512*ab+64*j}")
    a("s_waitcnt lgkmcnt(0)")

    mreg = ["v236", "v237"]
    lreg = ["v238", "v239"]
    for it in range(NIT):
        last = it == NIT - 1
        a("s_waitcnt vmcnt(16)")
        for t in range(4):
            for ab in range(2):
                sreg = SB + 8 * t + 4 * ab
                for j in range(4):
                    kr = KB + 16 * t + 4 * j
                    qr = 16 + 16 * ab + 4 * j
                    c = "0" if j == 0 else f"v[{sreg}:{sreg+3}]"
                    a(f"v_mfma_f32_16x16x32_bf16 v[{sreg}:{sreg+3}], v[{kr}:{kr+3}], v[{qr}:{qr+3}], {c}")
        if not last:
            issue_k(it + 1)
        a("s_nop 7")
        a("s_nop 1")
        for ab in range(2):
            vals = [f"v{SB+8*t+4*ab+r}" for t in range(4) for r in range(4)]
            tm = f"v{240+ab}"
            a(f"v_max3_f32 {tm}, {vals[0]}, {vals[1]}, {vals[2]}")
            k = 3
            while k + 1 < 16:
                a(f"v_max3_f32 {tm}, {tm}, {vals[k]}, {vals[k+1]}")
                k += 2
            a(f"v_max3_f32 {tm}, {tm}, {vals[15]}, {mreg[ab]}")
            xlane_reduce(a, "v_max_f32", tm, "v242")
            a(f"v_sub_f32 v243, {mreg[ab]}, {tm}")
            a(f"v_mul_f32 v243, {f32hex(C)}, v243")
            a(f"v_exp_f32 v{244+ab}, v243")
            a(f"v_mov_b32 {mreg[ab]}, {tm}")
            a(f"v_mul_f32 v243, {f32hex(C)}, {tm}")
            a(f"s_mov_b32 s21, {f32hex(C)}")
            for v in vals:
                a(f"v_fma_f32 {v}, {v}, s21, -v243")
            for v in vals:
                a(f"v_exp_f32 {v}, {v}")
            a("s_nop 0")
            a(f"v_mul_f32 {lreg[ab]}, {lreg[ab]}, v{244+ab}")
            for v in vals:
                a(f"v_add_f32 {lreg[ab]}, {lreg[ab]}, {v}")
        a("s_nop 1")
        for ab in range(2):
            for r in range(4):
                o = f"v{224+4*ab+r}"
                qp = "[0,0,2,2]" if r % 2 == 0 else "[1,1,3,3]"
                a(f"v_mul_f32_dpp {o}, v{244+ab}, {o} quad_perm:{qp} row_mask:0xf bank_mask:0xf")
        a(f"s_waitcnt vmcnt({16 if not last else 0})")
        k = 0
        for t in range(4):
            for r in range(4):
                vr = VB + 16 * t + 4 * r
                for ab in range(2):
                    p = f"v{SB+8*t+4*ab+r}"
                    ar = 240 + 4 * (k % 3)
                    k += 1
                    a(f"v_cvt_pk_bf16_f32 v252, {p}, {p}")
                    for jj in range(4):
                        a(f"v_and_b32 v{ar+jj}, v252, v{232+jj}")
                    a("s_nop 1")
                    o = 224 + 4 * ab
                    a(f"v_mfma_f32_16x16x32_bf16 v[{o}:{o+3}], v[{ar}:{ar+3}], v[{vr}:{vr+3}], v[{o}:{o+3}]")
        if not last:
            issue_v(it + 1)
        a("s_nop 7")
        a("s_nop 1")
    for ab in range(2):
        xlane_reduce(a, "v_add_f32", lreg[ab], "v242")
    a("""
v_lshlrev_b32 v9, 11, v1
v_lshl_add_u32 v9, v3, 5, v9
v_lshl_add_u32 v9, v4, 3, v9
""")
    for ab in range(2):
        for r in range(4):
            off = 4096 + (2 * ab + (r & 1)) * 512 + (r >> 1) * 4
            a(f"ds_write_b32 v9, v{224+4*ab+r} offset:{off}")
    a("""
v_lshlrev_b32 v10, 5, v1
v_lshl_add_u32 v10, v2, 2, v10
v_cmp_gt_u32 vcc, 2, v2
s_and_saveexec_b64 s[22:23], vcc
""")
    for ab in range(2):
        a(f"ds_write_b32 v10, {mreg[ab]} offset:{1024+8*ab}")
        a(f"ds_write_b32 v10, {lreg[ab]} offset:{1024+16+8*ab}")
    a("""
s_mov_b64 exec, s[22:23]
s_waitcnt lgkmcnt(0)
s_barrier
""")
    a("""
v_lshrrev_b32 v9, 7, v0
v_lshlrev_b32 v10, 2, v9
v_lshlrev_b32 v11, 2, v0
""")
    for w in range(8):
        a(f"ds_read_b32 v{16+w}, v10 offset:{1024+32*w}")
        a(f"ds_read_b32 v{24+w}, v10 offset:{1024+32*w+16}")
        a(f"ds_read_b32 v{32+w}, v11 offset:{4096+2048*w}")
    a("s_waitcnt lgkmcnt(0)")
    a("v_max3_f32 v40, v16, v17, v18")
    a("v_max3_f32 v40, v40, v19, v20")
    a("v_max3_f32 v40, v40, v21, v22")
    a("v_max_f32 v40, v40, v23")
    a("v_mov_b32 v41, 0")
    a("v_mov_b32 v42, 0")
    for w in range(8):
        a(f"v_sub_f32 v43, v{16+w}, v40")
        a(f"v_mul_f32 v43, {f32hex(C)}, v43")
        a(f"v_exp_f32 v43, v43")
        a("s_nop 0")
        a(f"v_fmac_f32 v41, v{24+w}, v43")
        a(f"v_fmac_f32 v42, v{32+w}, v43")
    a(f"""
s_lshl_b32 s24, s2, 11
v_add_u32 v11, s24, v11
global_store_dword v11, v42, s[12:13] offset:0
""".replace("offset:0", ""))
    a.lines.pop()
    a(f"v_add_u32 v11, {WS_PO}, v11")
    a("global_store_dword v11, v42, s[12:13]")
    a(f"""
v_and_b32 v12, 127, v0
v_cmp_eq_u32 vcc, 0, v12
s_lshl_b32 s24, s2, 5
v_lshl_add_u32 v12, v9, 2, s24
v_add_u32 v12, {WS_PML}, v12
s_and_saveexec_b64 s[22:23], vcc
global_store_dword v12, v40, s[12:13]
global_store_dword v12, v41, s[12:13] offset:16
""")
    a.label("K3_END")
    a("s_endpgm")
    kernel_desc(a, name, 256)


def gen_k4(a):
    name = "k4_kernel"
    kernel_begin(a, name)
    C = SCALE * LOG2E
    a(f"""
s_cmp_ge_u32 s2, 256
s_cbranch_scc1 K4_END
s_load_dwordx2 s[6:7], s[0:1], 32
s_load_dwordx2 s[8:9], s[0:1], 104
s_and_b32 s10, s2, 31
s_lshr_b32 s11, s2, 5
v_lshrrev_b32 v1, 3, v0
v_and_b32 v2, 7, v0
s_lshl_b32 s12, s10, 7
v_lshl_add_u32 v3, v1, 2, s12
v_lshlrev_b32 v4, 10, v3
s_lshl_b32 s13, s11, 7
v_lshl_add_u32 v5, v2, 4, s13
v_add_u32 v4, v4, v5
s_waitcnt lgkmcnt(0)
global_load_dwordx4 v[8:11], v4, s[6:7]
global_load_dwordx4 v[12:15], v4, s[6:7] offset:1024
global_load_dwordx4 v[16:19], v4, s[6:7] offset:2048
global_load_dwordx4 v[20:23], v4, s[6:7] offset:3072
""")
    a(f"""
v_lshrrev_b32 v32, 7, v0
v_and_b32 v33, 127, v0
s_lshr_b32 s14, s10, 2
s_and_b32 s15, s10, 3
v_lshl_add_u32 v34, v32, 3, s14
v_lshlrev_b32 v35, 9, v34
s_lshl_b32 s16, s15, 2
v_add_u32 v35, s16, v35
v_add_u32 v35, {WS_PML}, v35
v_lshlrev_b32 v36, 15, v34
s_lshl_b32 s16, s15, 9
v_lshl_add_u32 v36, v33, 2, v36
v_add_u32 v36, s16, v36
v_add_u32 v36, {WS_PO}, v36
""")
    for s in range(16):
        a(f"global_load_dword v{64+s}, v35, s[8:9] offset:{32*s}")
        a(f"global_load_dword v{80+s}, v35, s[8:9] offset:{32*s+16}")
    for s in range(16):
        a(f"global_load_dword v{96+s}, v36, s[8:9]")
        a(f"v_add_u32 v36, 0x800, v36")
    a("s_waitcnt vmcnt(0)")
    a("v_max3_f32 v40, v64, v65, v66")
    for s in range(3, 15, 2):
        a(f"v_max3_f32 v40, v40, v{64+s}, v{65+s}")
    a("v_max_f32 v40, v40, v79")
    a("v_mov_b32 v41, 0")
    a("v_mov_b32 v42, 0")
    for s in range(16):
        a(f"v_sub_f32 v43, v{64+s}, v40")
        a(f"v_mul_f32 v43, {f32hex(C)}, v43")
        a(f"v_exp_f32 v43, v43")
        a("s_nop 0")
        a(f"v_fmac_f32 v41, v{80+s}, v43")
        a(f"v_fmac_f32 v42, v{96+s}, v43")
    a("v_rcp_f32 v41, v41")
    a("s_nop 0")
    a("v_mul_f32 v42, v42, v41")
    bf16_round(a, "v42", "v42")
    a("""
v_lshlrev_b32 v45, 2, v0
ds_write_b32 v45, v42 offset:16384
s_waitcnt lgkmcnt(0)
s_barrier
v_lshlrev_b32 v45, 4, v1
ds_read_b128 v[24:27], v45 offset:16384
ds_read_b128 v[28:31], v45 offset:16896
s_waitcnt lgkmcnt(0)
""")
    gemv_fma(a, 8, 4, [f"v{24+r}" for r in range(4)], [f"v{28+r}" for r in range(4)], 44, "v41", "v42")
    gemv_reduce_lds(a, 44, 0)
    a(f"""
v_cmp_gt_u32 vcc, 128, v0
v_lshrrev_b32 v1, 4, v0
v_bfe_u32 v2, v0, 3, 1
v_and_b32 v3, 7, v0
s_lshl_b32 s15, s11, 6
v_lshl_add_u32 v4, v1, 3, v3
v_lshlrev_b32 v5, 9, v2
v_add3_u32 v4, v4, v5, s15
v_lshlrev_b32 v4, 2, v4
v_add_u32 v4, {WS_ACC1}, v4
s_and_saveexec_b64 s[16:17], vcc
s_cbranch_execz K4_END
global_atomic_add_f32 v4, v40, s[8:9]
""")
    a.label("K4_END")
    a("s_endpgm")
    kernel_desc(a, name, 128)


def gen_k5(a):
    name = "k5_kernel"
    kernel_begin(a, name)
    a(f"""
s_cmp_ge_u32 s2, 224
s_cbranch_scc1 K5_END
s_load_dwordx2 s[4:5], s[0:1], 0
s_load_dwordx2 s[6:7], s[0:1], 48
s_load_dwordx2 s[18:19], s[0:1], 56
s_load_dwordx2 s[8:9], s[0:1], 104
s_and_b32 s10, s2, 7
s_lshr_b32 s11, s2, 3
v_lshrrev_b32 v1, 3, v0
v_and_b32 v2, 7, v0
s_lshl_b32 s12, s10, 6
v_lshl_add_u32 v3, v1, 1, s12
v_mul_u32_u24 v4, 0xe00, v3
s_lshl_b32 s13, s11, 7
v_lshl_add_u32 v5, v2, 4, s13
v_add_u32 v4, v4, v5
s_waitcnt lgkmcnt(0)
global_load_dwordx4 v[8:11], v4, s[6:7]
global_load_dwordx4 v[12:15], v4, s[6:7] offset:3584
global_load_dwordx4 v[16:19], v4, s[18:19]
global_load_dwordx4 v[20:23], v4, s[18:19] offset:3584
""")
    a(f"""
v_and_b32 v6, 63, v0
v_lshlrev_b32 v7, 4, v6
global_load_dwordx4 v[24:27], v7, s[4:5]
global_load_dwordx4 v[28:31], v7, s[4:5] offset:1024
v_lshlrev_b32 v7, 5, v6
v_add_u32 v7, {WS_ACC1}, v7
global_load_dwordx4 v[64:67], v7, s[8:9]
global_load_dwordx4 v[68:71], v7, s[8:9] offset:16
global_load_dwordx4 v[72:75], v7, s[8:9] offset:2048
global_load_dwordx4 v[76:79], v7, s[8:9] offset:2064
""")
    a("v_lshlrev_b32 v7, 5, v6")
    for which, dst in ((1024, 80), (1536, 96), (2048, 112)):
        for b in range(2):
            off = WS_MOD + (b * 3072 + which) * 4
            a(f"v_add_u32 v48, {off}, v7")
            a(f"global_load_dwordx4 v[{dst+8*b}:{dst+8*b+3}], v48, s[8:9]")
            a(f"global_load_dwordx4 v[{dst+8*b+4}:{dst+8*b+7}], v48, s[8:9] offset:16")
    a("s_waitcnt vmcnt(0)")
    for b in range(2):
        for d in range(4):
            a(f"v_lshlrev_b32 v{128+8*b+2*d}, 16, v{24+4*b+d}")
            a(f"v_and_b32 v{128+8*b+2*d+1}, 0xffff0000, v{24+4*b+d}")
    for i in range(16):
        bf16_round(a, f"v{64+i}", f"v{64+i}")
        a(f"v_mul_f32 v{64+i}, v{80+i}, v{64+i}")
        bf16_round(a, f"v{64+i}", f"v{64+i}")
        a(f"v_add_f32 v{128+i}, v{128+i}, v{64+i}")
        bf16_round(a, f"v{128+i}", f"v{128+i}")
    a(f"""
v_lshlrev_b32 v7, 5, v6
v_add_u32 v7, {WS_X1}, v7
v_cmp_gt_u32 vcc, 64, v0
s_cmp_eq_u32 s2, 0
s_cselect_b64 s[16:17], vcc, 0
s_and_saveexec_b64 s[16:17], s[16:17]
s_cbranch_execz K5_NOX1
global_store_dwordx4 v7, v[128:131], s[8:9]
global_store_dwordx4 v7, v[132:135], s[8:9] offset:16
global_store_dwordx4 v7, v[136:139], s[8:9] offset:2048
global_store_dwordx4 v7, v[140:143], s[8:9] offset:2064
""")
    a.label("K5_NOX1")
    a("s_mov_b64 exec, s[16:17]")
    ln_stats(a, [f"v{128+i}" for i in range(8)], "v64", "v65", "v66", "v67")
    ln_stats(a, [f"v{136+i}" for i in range(8)], "v64", "v65", "v68", "v69")
    a("v_rcp_f32 v67, v67")
    a("v_rcp_f32 v69, v69")
    a("s_nop 0")
    for b in range(2):
        for e in range(8):
            x = f"v{128+8*b+e}"
            a(f"v_sub_f32 {x}, {x}, v{66+2*b}")
            bf16_round(a, x, x)
            a(f"v_mul_f32 {x}, {x}, v{67+2*b}")
            bf16_round(a, x, x)
            cbv = f"v{112+8*b+e}"
            a(f"v_add_f32 {cbv}, 1.0, {cbv}")
            bf16_round(a, cbv, cbv)
            a(f"v_mul_f32 {x}, {x}, {cbv}")
            bf16_round(a, x, x)
            a(f"v_add_f32 {x}, {x}, v{96+8*b+e}")
            bf16_round(a, x, x)
    a("""
v_lshlrev_b32 v7, 5, v6
ds_write_b128 v7, v[128:131] offset:16384
ds_write_b128 v7, v[132:135] offset:16400
ds_write_b128 v7, v[136:139] offset:18432
ds_write_b128 v7, v[140:143] offset:18448
s_waitcnt lgkmcnt(0)
s_barrier
v_lshlrev_b32 v7, 2, v3
ds_read_b64 v[24:25], v7 offset:16384
ds_read_b64 v[26:27], v7 offset:18432
s_waitcnt lgkmcnt(0)
""")
    gemv_fma(a, 8, 2, ["v24", "v25"], ["v26", "v27"], 44, "v41", "v42")
    gemv_fma(a, 16, 2, ["v24", "v25"], ["v26", "v27"], 144, "v41", "v42")
    gemv_reduce_lds(a, 44, 0)
    a("v_mov_b32 v160, v40")
    a("s_barrier")
    gemv_reduce_lds(a, 144, 0)
    a(f"""
v_cmp_gt_u32 vcc, 128, v0
v_lshrrev_b32 v1, 4, v0
v_bfe_u32 v2, v0, 3, 1
v_and_b32 v3, 7, v0
s_lshl_b32 s15, s11, 6
v_lshl_add_u32 v4, v1, 3, v3
v_mul_u32_u24 v5, 1792, v2
v_add3_u32 v4, v4, v5, s15
v_lshlrev_b32 v4, 2, v4
v_add_u32 v4, {WS_GU}, v4
v_add_u32 v5, {1792*2*4}, v4
s_and_saveexec_b64 s[16:17], vcc
s_cbranch_execz K5_END
global_atomic_add_f32 v4, v160, s[8:9]
global_atomic_add_f32 v5, v40, s[8:9]
""")
    a.label("K5_END")
    a("s_endpgm")
    kernel_desc(a, name, 168)


def gen_k6(a):
    name = "k6_kernel"
    kernel_begin(a, name)
    a(f"""
s_cmp_ge_u32 s2, 224
s_cbranch_scc1 K6_END
s_load_dwordx2 s[6:7], s[0:1], 64
s_load_dwordx2 s[8:9], s[0:1], 104
s_lshr_b32 s11, s2, 5
s_mul_i32 s13, s11, 32
s_sub_u32 s10, s2, s13
s_cmp_ge_u32 s10, 28
""")
    a.lines.pop()
    a.lines.pop(); a.lines.pop(); a.lines.pop()
    a(f"""
s_and_b32 s11, s2, 7
s_lshr_b32 s10, s2, 3
v_lshrrev_b32 v1, 3, v0
v_and_b32 v2, 7, v0
s_lshl_b32 s12, s10, 6
v_lshl_add_u32 v3, v1, 1, s12
v_lshlrev_b32 v4, 10, v3
s_lshl_b32 s13, s11, 7
v_lshl_add_u32 v5, v2, 4, s13
v_add_u32 v4, v4, v5
v_lshlrev_b32 v6, 2, v3
v_add_u32 v6, {WS_GU}, v6
v_add_u32 v7, {1792*2*4}, v6
s_waitcnt lgkmcnt(0)
global_load_dwordx4 v[8:11], v4, s[6:7]
global_load_dwordx4 v[12:15], v4, s[6:7] offset:1024
global_load_dwordx2 v[24:25], v6, s[8:9]
global_load_dwordx2 v[28:29], v7, s[8:9]
v_add_u32 v6, {1792*4}, v6
v_add_u32 v7, {1792*4}, v7
global_load_dwordx2 v[26:27], v6, s[8:9]
global_load_dwordx2 v[30:31], v7, s[8:9]
s_waitcnt vmcnt(0)
""")
    for i in range(4):
        bf16_round(a, f"v{24+i}", f"v{24+i}")
        bf16_round(a, f"v{28+i}", f"v{28+i}")
        a(f"v_mul_f32 v{24+i}, v{24+i}, v{28+i}")
        bf16_round(a, f"v{24+i}", f"v{24+i}")
    gemv_fma(a, 8, 2, ["v24", "v25"], ["v26", "v27"], 44, "v41", "v42")
    gemv_reduce_lds(a, 44, 0)
    a(f"""
v_cmp_gt_u32 vcc, 128, v0
v_lshrrev_b32 v1, 4, v0
v_bfe_u32 v2, v0, 3, 1
v_and_b32 v3, 7, v0
s_lshl_b32 s15, s11, 6
v_lshl_add_u32 v4, v1, 3, v3
v_lshlrev_b32 v5, 9, v2
v_add3_u32 v4, v4, v5, s15
v_lshlrev_b32 v4, 2, v4
v_add_u32 v4, {WS_ACC2}, v4
s_and_saveexec_b64 s[16:17], vcc
s_cbranch_execz K6_NOADD
global_atomic_add_f32 v4, v40, s[8:9]
""")
    a.label("K6_NOADD")
    a(f"""
s_mov_b64 exec, s[16:17]
s_load_dwordx2 s[20:21], s[0:1], 96
s_load_dwordx2 s[22:23], s[0:1], 88
s_waitcnt vmcnt(0) lgkmcnt(0)
s_barrier
v_mov_b32 v6, 0
v_mov_b32 v7, 1
v_cmp_eq_u32 vcc, 0, v0
s_and_saveexec_b64 s[16:17], vcc
s_cbranch_execz K6_NOCNT
global_atomic_add v7, v6, v7, s[20:21] sc0
s_waitcnt vmcnt(0)
v_lshlrev_b32 v6, 2, v0
ds_write_b32 v6, v7
s_waitcnt lgkmcnt(0)
""")
    a.label("K6_NOCNT")
    a(f"""
s_mov_b64 exec, s[16:17]
s_barrier
v_mov_b32 v6, 0
ds_read_b32 v7, v6
s_waitcnt lgkmcnt(0)
v_readfirstlane_b32 s24, v7
s_nop 3
s_cmp_lg_u32 s24, 223
s_cbranch_scc1 K6_END
""")
    for i in range(4):
        a(f"""
v_add_u32 v1, {256*i}, v0
v_lshlrev_b32 v2, 2, v1
v_lshrrev_b32 v3, 9, v1
v_and_b32 v4, 511, v1
v_mul_u32_u24 v3, 3072, v3
v_add3_u32 v3, v3, v4, 0
v_add_u32 v3, 2560, v3
v_lshlrev_b32 v3, 2, v3
v_add_u32 v5, {WS_ACC2}, v2
v_mov_b32 v8, 0
global_atomic_add_f32 v8, v5, v8, s[8:9] sc0
v_add_u32 v5, {WS_X1}, v2
global_load_dword v9, v5, s[8:9]
v_add_u32 v5, {WS_MOD}, v3
global_load_dword v10, v5, s[8:9]
s_waitcnt vmcnt(0)
""")
        bf16_round(a, "v8", "v8")
        a("v_mul_f32 v8, v8, v10")
        bf16_round(a, "v8", "v8")
        a("v_add_f32 v8, v8, v9")
        a("v_cvt_pk_bf16_f32 v8, v8, v8")
        a("v_lshlrev_b32 v1, 1, v1")
        a("global_store_short v1, v8, s[22:23]")
    a.label("K6_END")
    a("s_endpgm")
    kernel_desc(a, name, 96)


def gen_k7(a):
    name = "k7_kernel"
    kernel_begin(a, name)
    a(f"""
s_cmp_ge_u32 s2, 4
s_cbranch_scc1 K7_END
s_load_dwordx2 s[6:7], s[0:1], 88
s_load_dwordx2 s[8:9], s[0:1], 104
s_lshl_b32 s10, s2, 8
v_add_u32 v1, s10, v0
v_lshlrev_b32 v2, 2, v1
v_lshrrev_b32 v3, 9, v1
v_and_b32 v4, 511, v1
v_mul_u32_u24 v3, 3072, v3
v_add3_u32 v3, v3, v4, 0
v_add_u32 v3, 2560, v3
v_lshlrev_b32 v3, 2, v3
s_waitcnt lgkmcnt(0)
v_add_u32 v5, {WS_ACC2}, v2
global_load_dword v8, v5, s[8:9]
v_add_u32 v5, {WS_X1}, v2
global_load_dword v9, v5, s[8:9]
""")
    a(f"v_add_u32 v5, {WS_MOD}, v3")
    a(f"global_load_dword v10, v5, s[8:9]")
    a("s_waitcnt vmcnt(0)")
    bf16_round(a, "v8", "v8")
    a("v_mul_f32 v8, v8, v10")
    bf16_round(a, "v8", "v8")
    a("v_add_f32 v8, v8, v9")
    a("v_cvt_pk_bf16_f32 v8, v8, v8")
    a("v_lshlrev_b32 v1, 1, v1")
    a("global_store_short v1, v8, s[6:7]")
    a.label("K7_END")
    a("s_endpgm")
    kernel_desc(a, name, 32)


def main():
    global NT
    if len(sys.argv) > 2 and sys.argv[2] == 'nt':
        NT = ' nt'
    a = Asm()
    hdr = open(f"cdna_kernels/{NAME}.s.ref").read().split("\n")
    for ln in hdr:
        if ln.startswith("; @launch"):
            continue
        if not ln.startswith(";"):
            break
        a.raw(ln)
    a.raw("; @launch kernel=k1_kernel grid=(192,1,1) block=(256,1,1) lds=20480")
    a.raw("; @launch kernel=k2_kernel grid=(256,1,1) block=(256,1,1) lds=20480")
    a.raw("; @launch kernel=k3_kernel grid=(256,1,1) block=(512,1,1) lds=20480")
    a.raw("; @launch kernel=k4_kernel grid=(256,1,1) block=(256,1,1) lds=20480")
    a.raw("; @launch kernel=k5_kernel grid=(224,1,1) block=(256,1,1) lds=24576")
    a.raw("; @launch kernel=k6_kernel grid=(224,1,1) block=(256,1,1) lds=20480")
    a.raw('.amdgcn_target "amdgcn-amd-amdhsa--gfx950"')
    gen_k1(a)
    gen_k2(a)
    gen_k3(a)
    gen_k4(a)
    gen_k5(a)
    gen_k6(a)
    out = sys.argv[1] if len(sys.argv) > 1 else f"cdna_kernels/{NAME}.s"
    open(out, "w").write(a.text())


if __name__ == "__main__":
    main()
```
